```python
import torch

def _softmax(x, axis=-1):
    return torch.softmax(x, dim=axis)
def _gelu(x):
    return torch.nn.functional.gelu(x, approximate="tanh")
def _silu(x):
    return torch.nn.functional.silu(x)
def _sigmoid(x):
    return torch.sigmoid(x)
def _layernorm(x, axis=-1, eps=1e-5):
    m = x.mean(dim=axis, keepdim=True)
    v = x.var(dim=axis, keepdim=True, unbiased=False)
    return (x - m) / torch.sqrt(v + eps)
def _scatter_add(tgt, idx, src, axis=0):
    return tgt.clone().index_add_(axis, idx, src)
def _segment_sum(src, seg, n):
    out = torch.zeros((n,) + src.shape[1:], dtype=src.dtype)
    return out.index_add_(0, seg, src)
def _pad(x, pw):
    flat = tuple(v for pair in reversed(pw) for v in pair)
    return torch.nn.functional.pad(x, flat)

kernel_name = 'standalone__mha_block_cached__near_ridge'

def setup_inputs():

    _w = (lambda a: (lambda t: t.to(torch.bfloat16) if t.is_floating_point() else t)(torch.as_tensor(a)))
    B, Sq, D = 16, 96, 512
    H, Sk, Dh = 32, 1024, 128
    return {
        "x": _w((lambda *s: torch.randn(*s, dtype=torch.bfloat16) * 0.8)(B, Sq, D)),
        "k_cache": _w((lambda *s: torch.randn(*s, dtype=torch.bfloat16) * 0.8)(B, H, Sk, Dh)),
        "v_cache": _w((lambda *s: torch.randn(*s, dtype=torch.bfloat16) * 0.05)(B, H, Sk, Dh)),
        "wq": _w((lambda *s: torch.randn(*s, dtype=torch.bfloat16) * 0.8)(D, H * Dh) * (D ** -0.5)),
        "wo": _w((lambda *s: torch.randn(*s, dtype=torch.bfloat16) * 0.05)(H * Dh, D) * ((H * Dh) ** -0.5)),
    }

def reference(x, k_cache, v_cache, wq, wo):
    B, Sq, D = x.shape
    H, Dh = 32, 128
    q = (lambda x, *d: x.permute(*d))((x @ wq).reshape(B, Sq, H, Dh), 0, 2, 1, 3)
    scores = torch.einsum("bhqd,bhkd->bhqk", q, k_cache) * (Dh ** -0.5)
    p = _softmax(scores, axis=-1)
    o = torch.einsum("bhqk,bhkd->bhqd", p, v_cache)
    return (lambda x, *d: x.permute(*d))(o, 0, 2, 1, 3).reshape(B, Sq, H * Dh) @ wo
```

```python
KNAME = "standalone__mha_block_cached__near_ridge_kernel"

class Asm:
    def __init__(self):
        self.lines = []
        self._uid = 0
    def __call__(self, s=""):
        for l in s.split("\n"):
            self.lines.append(l)
    def lab(self, name):
        self.lines.append(name + ":")
    def uid(self, p="L"):
        self._uid += 1
        return "%s_%d" % (p, self._uid)
    def text(self):
        return "\n".join(self.lines) + "\n"

def header(launch_lines, comment=""):
    s = comment
    for l in launch_lines:
        s += "; @launch " + l + "\n"
    s += '.amdgcn_target "amdgcn-amd-amdhsa--gfx950"\n.text\n'
    return s

def kernel_begin(name):
    return ".globl %s\n.p2align 8\n.type %s,@function\n%s:\n" % (name, name, name)

def descriptor(name, vgpr, sgpr, accum, wgy=False):
    s = '.section .rodata,"a"\n.p2align 6\n.amdhsa_kernel %s\n' % name
    s += "  .amdhsa_next_free_vgpr %d\n  .amdhsa_next_free_sgpr %d\n  .amdhsa_accum_offset %d\n" % (vgpr, sgpr, accum)
    s += "  .amdhsa_group_segment_fixed_size 0\n  .amdhsa_kernarg_size 64\n  .amdhsa_user_sgpr_count 2\n"
    s += "  .amdhsa_user_sgpr_kernarg_segment_ptr 1\n  .amdhsa_system_sgpr_workgroup_id_x 1\n"
    if wgy:
        s += "  .amdhsa_system_sgpr_workgroup_id_y 1\n"
    s += "  .amdhsa_float_denorm_mode_32 3\n"
    s += ".end_amdhsa_kernel\n"
    return s

def srd(a, d, base, nbytes):
    a("s_mov_b32 s%d, s%d" % (d, base))
    a("s_and_b32 s%d, s%d, 0xffff" % (d + 1, base + 1))
    a("s_mov_b32 s%d, 0x%x" % (d + 2, nbytes))
    a("s_mov_b32 s%d, 0x00020000" % (d + 3))
```

```python
import re

REG = re.compile(r'^(v|a|s)(\d+)$')
RNG = re.compile(r'^(v|a|s)\[(\d+):(\d+)\]$')

def regs(tok):
    tok = tok.strip()
    neg = tok.startswith('-')
    if neg: tok = tok[1:]
    if tok.startswith('abs(') and tok.endswith(')'): tok = tok[4:-1]
    if tok.startswith('|') and tok.endswith('|'): tok = tok[1:-1]
    m = REG.match(tok)
    if m: return [(m.group(1), int(m.group(2)))]
    m = RNG.match(tok)
    if m: return [(m.group(1), i) for i in range(int(m.group(2)), int(m.group(3)) + 1)]
    if tok == 'vcc': return [('s', 'vcc')]
    if tok == 'exec': return [('s', 'exec')]
    if tok == 'm0': return [('s', 'm0')]
    return []

TRANS = ('v_exp_f32', 'v_log_f32', 'v_rcp_f32', 'v_rsq_f32', 'v_sqrt_f32', 'v_sin_f32', 'v_cos_f32')

class Ins:
    def __init__(self, line):
        self.line = line
        t = line.split(';')[0].strip()
        self.op = None
        self.kind = None
        self.w = []; self.r = []
        self.states = 1
        if not t or t.endswith(':') or t.startswith('.'):
            self.states = 0
            self.kind = 'label' if t.endswith(':') else 'none'
            return
        parts = t.split(None, 1)
        op = parts[0]; self.op = op
        rest = parts[1] if len(parts) > 1 else ''
        ops = [x.strip() for x in rest.split(',')] if rest else []
        mods = ''
        if ops:
            last = ops[-1].split()
            if last:
                ops[-1] = last[0]; mods = ' '.join(last[1:])
        self.ops = ops; self.mods = mods
        if op == 's_nop':
            self.kind = 'nop'; self.states = int(ops[0], 0) + 1; return
        if op.startswith('v_mfma'):
            self.kind = 'mfma'
            self.passes = 8 if '32x32' in op else 4
            self.D = regs(ops[0]); self.A = regs(ops[1]); self.B = regs(ops[2]); self.C = regs(ops[3])
            self.w = self.D; self.r = self.A + self.B + self.C
            return
        if op.startswith('v_'):
            self.kind = 'valu'
            self.trans = op.replace('_e32', '').replace('_e64', '') in TRANS
            if op.startswith('v_permlane') and 'swap' in op:
                self.w = regs(ops[0]) + regs(ops[1]); self.r = self.w[:]
            elif op.startswith('v_cmp'):
                self.w = regs(ops[0]); self.r = sum((regs(x) for x in ops[1:]), [])
            elif op.startswith('v_readfirstlane') or op.startswith('v_readlane'):
                self.w = regs(ops[0]); self.r = sum((regs(x) for x in ops[1:]), [])
            else:
                self.w = regs(ops[0]); self.r = sum((regs(x) for x in ops[1:]), [])
                if op.startswith('v_fmac') or op.startswith('v_writelane'):
                    self.r += self.w
                if op.startswith('v_add_co') or op.startswith('v_addc_co') or op.startswith('v_sub_co'):
                    self.w += regs(ops[1])
                if op.startswith('v_cndmask') and len(ops) == 3:
                    self.r += [('s', 'vcc')]
            return
        if op.startswith('ds_'):
            self.kind = 'ds'
            if op.startswith('ds_read') or op.startswith('ds_bpermute') or op.startswith('ds_swizzle'):
                self.w = regs(ops[0]); self.r = sum((regs(x) for x in ops[1:]), [])
                self.ld = True
            else:
                self.r = sum((regs(x) for x in ops), []); self.ld = False
            return
        if op.startswith('buffer_') or op.startswith('global_'):
            self.kind = 'vmem'
            self.lds = ' lds' in (' ' + mods)
            self.wide = False
            if op in ('buffer_wbl2', 'buffer_inv'):
                return
            if 'load' in op and not self.lds and 'load_lds' not in op:
                self.w = regs(ops[0]); self.r = sum((regs(x) for x in ops[1:]), [])
            elif 'load' in op:
                self.lds = True
                self.r = sum((regs(x) for x in ops), []) + [('s', 'm0')]
            elif 'atomic' in op:
                self.r = sum((regs(x) for x in ops), [])
                if 'sc0' in mods:
                    self.w = regs(ops[0])
            else:
                self.r = sum((regs(x) for x in ops), [])
                self.wide = ('x4' in op or 'x3' in op)
                self.data = regs(ops[0]) if op.startswith('buffer_') else regs(ops[1])
            return
        if op.startswith('s_'):
            self.kind = 'salu'
            if op in ('s_waitcnt', 's_barrier', 's_endpgm', 's_sleep', 's_setprio') or op.startswith('s_cbranch') or op == 's_branch':
                return
            if op.startswith('s_cmp'):
                self.r = sum((regs(x) for x in ops), []); return
            if op.startswith('s_load') or op.startswith('s_memrealtime') or op.startswith('s_memtime'):
                self.kind = 'smem'
            self.w = regs(ops[0]) if ops else []
            self.r = sum((regs(x) for x in ops[1:]), [])
            return
        raise ValueError("unknown instruction: " + line)

def isv(r): return r[0] in ('v', 'a')

def required(prev, cur):
    n = 0
    pw = set(prev.w); cw = set(cur.w); cr = set(cur.r)
    if prev.kind == 'valu':
        vw = {r for r in pw if isv(r)}
        sw = {r for r in pw if not isv(r)}
        if cur.kind == 'mfma' and vw & cr: n = max(n, 2)
        if cur.kind == 'valu':
            if prev.trans and not cur.trans and vw & cr: n = max(n, 1)
            if prev.trans and cur.trans and vw & cr: n = max(n, 1)
            if cur.op.startswith('v_permlane') and vw & cr: n = max(n, 2)
            if (cur.op.startswith('v_readfirstlane') or cur.op.startswith('v_readlane')) and vw & cr: n = max(n, 1)
            if 'dpp' in (cur.mods or '') or 'row_' in (cur.mods or '') or 'quad_perm' in (cur.mods or ''):
                if vw & cr: n = max(n, 2)
            if sw & cr: n = max(n, 2)
        if cur.kind == 'vmem' and sw & cr: n = max(n, 5)
        if cur.kind in ('salu',) and sw & cr: n = max(n, 4)
    if prev.kind == 'mfma':
        p = prev.passes
        D = set(prev.D)
        if cur.kind == 'mfma':
            if D & (set(cur.A) | set(cur.B)): n = max(n, 8 if p == 4 else 12)
            if D & set(cur.C):
                if list(cur.C) == list(prev.D) and cur.passes == p: pass
                else: n = max(n, 6 if p == 4 else 10)
            if D & set(cur.D) and list(cur.D) != list(prev.D): n = max(n, 6 if p == 4 else 10)
        elif cur.kind == 'valu':
            if D & (cr | cw): n = max(n, 8 if p == 4 else 12)
            if set(prev.C) & cw: n = max(n, 3 if p == 4 else 7)
        elif cur.kind in ('ds', 'vmem'):
            if D & (cr | cw): n = max(n, 8 if p == 4 else 12)
            if set(prev.C) & cw: n = max(n, 3 if p == 4 else 7)
    if prev.kind == 'vmem' and getattr(prev, 'wide', False):
        if cur.kind == 'valu' and set(prev.data) & cw: n = max(n, 2)
        elif cur.kind in ('mfma', 'ds', 'vmem') and set(prev.data) & cw: n = max(n, 2)
    if prev.kind == 'salu' and ('s', 'm0') in pw:
        if cur.kind == 'vmem' and getattr(cur, 'lds', False): n = max(n, 1)
    return n

def fix(lines, verbose=False, tag=''):
    out = []
    inserted = 0
    for line in lines:
        cur = Ins(line)
        if cur.states and cur.kind != 'nop':
            need = 0; dist = 0
            for prev in reversed(out):
                if dist >= 20: break
                if prev.states == 0: continue
                req = required(prev, cur)
                if req > dist: need = max(need, req - dist)
                dist += prev.states
            while need > 0:
                k = min(need, 16)
                out.append(Ins("s_nop %d" % (k - 1)))
                if verbose: print("  [hz%s] s_nop %d before: %s" % (tag, k - 1, line.strip()))
                inserted += k; need -= k
        out.append(cur)
    return [i.line for i in out], inserted

def check_counters(lines, name=''):
    lg = []
    vm = []
    errs = []
    smem = 0
    for n, line in enumerate(lines):
        i = Ins(line)
        if not i.states: continue
        if i.op == 's_waitcnt':
            t = line.split(';')[0]
            m = re.search(r'lgkmcnt\((\d+)\)', t)
            if m:
                k = int(m.group(1))
                while len(lg) > k: lg.pop(0)
            m = re.search(r'vmcnt\((\d+)\)', t)
            if m:
                k = int(m.group(1))
                while len(vm) > k: vm.pop(0)
            continue
        touched = set(i.r) | set(i.w)
        for q, nm in ((lg, 'lgkm'), (vm, 'vm')):
            for dst, l2 in q:
                if dst & touched:
                    errs.append("%s line %d: '%s' touches %s pending from '%s'" % (name, n, line.strip(), sorted(dst & touched)[:2], l2.strip()))
        if i.kind == 'ds':
            lg.append((set(i.w), line))
        elif i.kind == 'smem':
            lg.append((set(i.w), line))
        elif i.kind == 'vmem' and i.op not in ('buffer_wbl2', 'buffer_inv'):
            vm.append((set(i.w), line))
    return errs
```

```python
import sys, math
from asmlib import *
import hazard

C_SCALE = math.log2(math.e) / math.sqrt(128.0)
T_LOG2 = 8.0
import struct
def fbits(x): return struct.unpack("<I", struct.pack("<f", x))[0]

class G(Asm):
    def __init__(self):
        super().__init__()
        self.vm = []
    def vmem(self, s, tag):
        self(s); self.vm.append(tag)
    def vwait(self, tag, extra=""):
        idx = max(i for i, t in enumerate(self.vm) if t == tag)
        n = len(self.vm) - 1 - idx
        assert n <= 63, n
        self("s_waitcnt vmcnt(%d)%s" % (n, extra))
        self.vm = self.vm[idx + 1:]
        return n

def stamp(a, idx, opts):
    if not opts.get('stamps'): return
    a("s_memrealtime s[%d:%d]" % (80 + 2 * idx, 81 + 2 * idx))

def stamp_flush(a, n, opts, wave_s, ws_srd, wg_s, base_idx=0, nstamp=8):
    if not opts.get('stamps'): return
    l = a.uid("L_st%d" % base_idx)
    a("s_waitcnt lgkmcnt(0)")
    a("s_cmp_eq_u32 s%d, 0" % wave_s)
    a("s_cbranch_scc0 %s" % l)
    a("s_mul_i32 s3, s%d, %d" % (wg_s, nstamp * 8))
    a("s_add_u32 s3, s3, 0x%x" % (0x1F000000 + base_idx * 8))
    a("v_mov_b32 v2, 0")
    a("v_cmp_eq_u32 vcc, 0, v1")
    a("s_and_saveexec_b64 s[70:71], vcc")
    for i in range(n):
        a("v_mov_b32 v4, s%d" % (80 + 2 * i))
        a("v_mov_b32 v5, s%d" % (81 + 2 * i))
        a("buffer_store_dwordx2 v[4:5], v2, s[%d:%d], s3 offen offset:%d" % (ws_srd, ws_srd + 3, i * 8))
        a("s_waitcnt vmcnt(0)")
    a("s_mov_b64 exec, s[70:71]")
    a.lab(l)

def gen_k1(opts):
    a = G()
    NT = " nt" if opts.get('nt', True) else ""
    WNT = opts.get('wq_flags', "")
    OST = opts.get('o_flags', "")
    vKd = [10, 11, 12, 13]; vVd = [14, 15]; vWd = 16; vX = 17
    aK = [18, 19, 20, 21]; aV = list(range(22, 30)); aW = [30, 31, 32, 33]
    vM = [34, 35, 36]; vMC = [37, 38, 39]; vTH = [40, 41, 42]
    vT = list(range(43, 52))
    S = lambda kt, qt: 52 + (kt * 3 + qt) * 4
    P = lambda qt: 76 + 4 * qt
    Kf = lambda s, kt: 88 + (s * 2 + kt) * 4
    Vf = lambda dt: 120 + 4 * dt
    O = lambda dt, qt: 152 + (dt * 3 + qt) * 4
    ONES = 248
    Qa = lambda s, qt: (s * 3 + qt) * 4
    La = lambda qt: 48 + 4 * qt
    Xa = lambda s, qt: 64 + (s * 3 + qt) * 4
    Wf = lambda buf, dt: 88 + buf * 32 + dt * 4
    vr = lambda b, n=4: "v[%d:%d]" % (b, b + n - 1)
    ar = lambda b, n=4: "a[%d:%d]" % (b, b + n - 1)
    sW = 40; sH = 41; sB = 42; sQH = 43
    sKV = 44
    sCur = 45; sPrev = 46; sDelta = 47; sWoff = 48; sT = 49
    sXo = [50, 51, 52]; sWq = 53; sC = 54; sTmp = 55; sTmp2 = 56; sThr = 57; sO = 58
    SX, SK, SV, SWQ, SWS = 20, 24, 28, 32, 36

    a(kernel_begin("attn_kernel"))
    a("s_cmp_ge_u32 s2, 256")
    a("s_cbranch_scc1 L_k1_end")
    stamp(a, 0, opts)
    a("s_load_dwordx16 s[4:19], s[0:1], 0")
    a("v_lshrrev_b32 v2, 6, v0")
    a("v_and_b32 v1, 63, v0")
    a("v_readfirstlane_b32 s%d, v2" % sW)
    a("v_lshrrev_b32 v2, 4, v1")
    a("v_and_b32 v3, 15, v1")
    for jj in range(4):
        a("v_add_u32 v4, %d, v2" % (4 * jj))
        a("v_xor_b32 v4, v3, v4")
        a("v_lshlrev_b32 v4, 4, v4")
        a("v_lshl_add_u32 v%d, v2, 8, v4" % vKd[jj])
    for jp in range(2):
        a("v_add_u32 v4, %d, v2" % (4 * jp))
        a("v_lshlrev_b32 v4, 1, v4")
        a("v_xor_b32 v4, v3, v4")
        a("v_lshlrev_b32 v4, 4, v4")
        a("v_lshl_add_u32 v%d, v2, 8, v4" % vVd[jp])
    a("v_lshlrev_b32 v4, 2, v2")
    a("v_xor_b32 v4, v3, v4")
    a("v_lshlrev_b32 v4, 4, v4")
    a("v_lshl_add_u32 v%d, v2, 13, v4" % vWd)
    a("v_lshlrev_b32 v4, 4, v2")
    a("v_lshl_add_u32 v%d, v3, 10, v4" % vX)
    a("s_waitcnt lgkmcnt(0)")
    srd(a, SX, 4, 16 * 96 * 512 * 2)
    srd(a, SK, 6, 0x8000000)
    srd(a, SV, 8, 0x8000000)
    srd(a, SWQ, 10, 0x400000)
    srd(a, SWS, 18, 0x20000000)
    a("s_and_b32 s%d, s2, 7" % sTmp)
    a("s_lshr_b32 s%d, s2, 3" % sTmp2)
    a("s_and_b32 s%d, s%d, 3" % (sH, sTmp))
    a("s_lshl_b32 s%d, s%d, 3" % (sH, sH))
    a("s_and_b32 s3, s%d, 7" % sTmp2)
    a("s_add_u32 s%d, s%d, s3" % (sH, sH))
    a("s_lshr_b32 s%d, s%d, 2" % (sB, sTmp))
    a("s_lshl_b32 s%d, s%d, 3" % (sB, sB))
    a("s_lshr_b32 s3, s%d, 3" % sTmp2)
    a("s_lshl_b32 s3, s3, 1")
    a("s_add_u32 s%d, s%d, s3" % (sB, sB))
    a("s_lshr_b32 s3, s%d, 1" % sW)
    a("s_add_u32 s%d, s%d, s3" % (sB, sB))
    a("s_and_b32 s%d, s%d, 1" % (sQH, sW))
    a("s_lshl_b32 s%d, s3, 14" % sWoff)
    a("s_lshl_b32 s3, s%d, 12" % sQH)
    a("s_add_u32 s%d, s%d, s3" % (sWoff, sWoff))
    a("s_lshl_b32 s%d, s%d, 5" % (sKV, sB))
    a("s_add_u32 s%d, s%d, s%d" % (sKV, sKV, sH))
    a("s_lshl_b32 s%d, s%d, 18" % (sKV, sKV))
    a("s_add_u32 s%d, s%d, s3" % (sKV, sKV))
    a("s_mul_i32 s%d, s%d, 96" % (sXo[0], sB))
    a("s_mul_i32 s3, s%d, 48" % sQH)
    a("s_add_u32 s%d, s%d, s3" % (sXo[0], sXo[0]))
    a("s_lshl_b32 s%d, s%d, 10" % (sXo[0], sXo[0]))
    a("s_add_u32 s%d, s%d, 16384" % (sXo[1], sXo[0]))
    a("s_add_u32 s%d, s%d, 32768" % (sXo[2], sXo[0]))
    a("s_lshl_b32 s%d, s%d, 16" % (sWq, sW))
    a("s_lshl_b32 s3, s%d, 8" % sH)
    a("s_add_u32 s%d, s%d, s3" % (sWq, sWq))
    a("s_mul_i32 s%d, s%d, 6" % (sO, sB))
    a("s_mul_i32 s3, s%d, 3" % sQH)
    a("s_add_u32 s%d, s%d, s3" % (sO, sO))
    a("s_lshl_b32 s%d, s%d, 17" % (sO, sO))
    a("s_lshl_b32 s3, s%d, 12" % sH)
    a("s_add_u32 s%d, s%d, s3" % (sO, sO))

    def issue_G(g):
        for tl in range(4):
            s = 4 * g + tl
            for jj in range(2):
                a("s_lshl_b32 s3, s%d, 11" % sW)
                a("s_add_u32 m0, s3, %d" % (32768 * (g + 1) + tl * 8192 + jj * 1024))
                a("s_add_u32 s%d, s%d, %d" % (sTmp, sWq, (32 * s + 4 * jj) * 8192))
                a.vmem("buffer_load_dwordx4 v%d, s[%d:%d], s%d offen%s lds" % (vWd, SWQ, SWQ + 3, sTmp, WNT), "G%d" % g)
            for qt in range(3):
                a.vmem("buffer_load_dwordx4 %s, v%d, s[%d:%d], s%d offen offset:%d" % (ar(Xa(s, qt)), vX, SX, SX + 3, sXo[qt], 64 * s), "G%d" % g)

    def issue_KV(tag, slot_sgpr=None, slot_const=None):
        if slot_sgpr is not None:
            a("s_add_u32 m0, s%d, s%d" % (slot_sgpr, sWoff))
        else:
            a("s_add_u32 m0, s%d, %d" % (sWoff, slot_const))
        a("s_nop 0")
        for jj in range(4):
            a.vmem("buffer_load_dwordx4 v%d, s[%d:%d], s%d offen offset:%d%s lds" % (vKd[jj], SK, SK + 3, sKV, jj * 1024, NT), tag)
        a("s_add_u32 m0, m0, 8192")
        a("s_nop 0")
        for jj in range(4):
            a.vmem("buffer_load_dwordx4 v%d, s[%d:%d], s%d offen offset:%d%s lds" % (vVd[jj & 1], SV, SV + 3, sKV, jj * 1024, NT), tag)
        a("s_add_u32 s%d, s%d, 8192" % (sKV, sKV))

    issue_G(0); issue_G(1); issue_G(2)
    a("v_lshrrev_b32 v5, 2, v3")
    a("v_and_b32 v6, 3, v1")
    a("s_lshr_b32 s3, s%d, 1" % sW)
    a("s_lshl_b32 s3, s3, 14")
    for s in range(4):
        a("v_add_u32 v4, %d, v2" % (4 * s))
        a("v_xor_b32 v4, v4, v3")
        a("v_lshlrev_b32 v4, 4, v4")
        a("v_lshl_add_u32 v4, v3, 8, v4")
        a("v_add_u32 v%d, s3, v4" % aK[s])
    a("v_lshl_add_u32 v4, v2, 2, v5")
    a("v_and_b32 v7, 7, v4")
    a("v_lshlrev_b32 v7, 5, v7")
    a("v_lshl_add_u32 v7, v4, 8, v7")
    a("v_lshl_add_u32 v7, v6, 3, v7")
    a("s_add_u32 s3, s3, 8192")
    a("v_add_u32 v%d, s3, v7" % aV[0])
    for dt in range(1, 8):
        a("v_xor_b32 v%d, %d, v%d" % (aV[dt], dt << 5, aV[0]))
    a("v_lshl_add_u32 v4, v2, 3, v5")
    a("v_lshlrev_b32 v4, 8, v4")
    a("v_lshl_add_u32 v4, v6, 4, v4")
    for sp in range(4):
        a("v_xor_b32 v7, %d, v5" % sp)
        a("v_lshl_add_u32 v%d, v7, 6, v4" % aW[sp])
    a("s_mov_b32 s%d, 0x%x" % (sC, fbits(C_SCALE)))
    a("s_mov_b32 s%d, 0x%x" % (sThr, fbits(T_LOG2 / C_SCALE)))
    for i in range(4):
        a("v_mov_b32 v%d, 0x3f803f80" % (ONES + i))
    for qt in range(3):
        a("v_mov_b32 v%d, 0xff800000" % vM[qt])
        a("v_mov_b32 v%d, 0xff800000" % vMC[qt])
        a("v_mov_b32 v%d, 0xff800000" % vTH[qt])

    def wq_reads(g, tl, buf):
        base = tl * 8192
        for sp in range(4):
            for ab in range(2):
                dt = 2 * sp + ab
                for u in range(2):
                    a("ds_read_b64_tr_b16 %s, v%d offset:%d" % (vr(Wf(buf, dt) + 2 * u, 2), aW[sp], base + u * 1024 + ab * 8))

    def q_mfmas(s, buf, dts):
        for dt in dts:
            for qt in range(3):
                c = "0" if s == 0 else vr(O(dt, qt))
                a("v_mfma_f32_16x16x32_bf16 %s, %s, %s, %s" % (vr(O(dt, qt)), vr(Wf(buf, dt)), ar(Xa(s, qt)), c))

    def compute_G(g, mid=None):
        for sp in range(4):
            a("v_add_u32 v%d, %d, v%d" % (aW[sp], 32768, aW[sp]))
        wq_reads(g, 0, 0)
        for tl in range(4):
            s = 4 * g + tl
            buf = tl & 1
            if tl < 3:
                a("s_waitcnt lgkmcnt(8)")
                q_mfmas(s, buf, range(0, 4))
                a("s_waitcnt lgkmcnt(0)")
                wq_reads(g, tl + 1, buf ^ 1)
                q_mfmas(s, buf, range(4, 8))
            else:
                a("s_waitcnt lgkmcnt(8)")
                q_mfmas(s, buf, range(0, 4))
                a("s_waitcnt lgkmcnt(0)")
                q_mfmas(s, buf, range(4, 8))
            if tl == 1 and mid: mid()

    a.vwait("G0")
    a("s_barrier")
    issue_G(3)
    compute_G(0, mid=lambda: issue_KV("KV0", slot_const=0))
    a.vwait("G1")
    a("s_barrier")
    issue_KV("KV1", slot_const=32768)
    compute_G(1)
    a.vwait("G2")
    a("s_barrier")
    issue_KV("KV2", slot_const=65536)
    compute_G(2)
    a.vwait("G3")
    a("s_barrier")
    issue_KV("KV3", slot_const=98304)
    compute_G(3)
    for sp in range(4):
        for qt in range(3):
            for ab in range(2):
                o = O(2 * sp + ab, qt)
                a("v_cvt_pk_bf16_f32 v%d, v%d, v%d" % (vT[0 + 2 * ab], o, o + 1))
                a("v_cvt_pk_bf16_f32 v%d, v%d, v%d" % (vT[1 + 2 * ab], o + 2, o + 3))
            for i in range(4):
                a("v_accvgpr_write_b32 a%d, v%d" % (Qa(sp, qt) + i, vT[i]))
    for i in range(96):
        a("v_mov_b32 v%d, 0" % (152 + i))
    for i in range(12):
        a("v_accvgpr_write_b32 a%d, 0" % (48 + i))
    stamp(a, 1, opts)
    a("s_mov_b32 s%d, 0" % sCur)
    a("s_mov_b32 s%d, 131072" % sPrev)
    a("s_mov_b32 s%d, 0" % sT)
    assert a.vm == ["KV0"] * 8 + ["KV1"] * 8 + ["KV2"] * 8 + ["KV3"] * 8, a.vm

    rare_blocks = []
    def step(vmn, dma, uid):
        a("s_waitcnt vmcnt(%d)" % vmn)
        a("s_barrier")
        for s in range(4):
            for kt in range(2):
                a("ds_read_b128 %s, v%d offset:%d" % (vr(Kf(s, kt)), aK[s], kt * 4096))
        if dma:
            issue_KV("KVx", slot_sgpr=sPrev)
        for s in range(4):
            a("s_waitcnt lgkmcnt(%d)" % (6 - 2 * s))
            for kt in range(2):
                for qt in range(3):
                    c = "0" if s == 0 else vr(S(kt, qt))
                    a("v_mfma_f32_16x16x32_bf16 %s, %s, %s, %s" % (vr(S(kt, qt)), vr(Kf(s, kt)), ar(Qa(s, qt)), c))
        for dt in range(8):
            for u in range(2):
                a("ds_read_b64_tr_b16 %s, v%d offset:%d" % (vr(Vf(dt) + 2 * u, 2), aV[dt], u * 4096))
        for qt in range(3):
            s0, s1 = S(0, qt), S(1, qt)
            t0, t1 = vT[2 * qt], vT[2 * qt + 1]
            a("v_max3_f32 v%d, v%d, v%d, v%d" % (t0, s0, s0 + 1, s0 + 2))
            a("v_max3_f32 v%d, v%d, v%d, v%d" % (t1, s0 + 3, s1, s1 + 1))
            a("v_max3_f32 v%d, v%d, v%d, v%d" % (t0, t0, s1 + 2, s1 + 3))
            a("v_max_f32 v%d, v%d, v%d" % (t0, t0, t1))
            a("v_sub_f32 v%d, v%d, v%d" % (t1, t0, vTH[qt]))
        a("v_max3_f32 v%d, v%d, v%d, v%d" % (vT[6], vT[1], vT[3], vT[5]))
        a("v_cmp_lt_f32 vcc, 0, v%d" % vT[6])
        a("s_cbranch_vccnz L_rare_%s" % uid)
        a.lab("L_cont_%s" % uid)
        rare_blocks.append(uid)
        for qt in range(3):
            for kt in range(2):
                s0 = S(kt, qt)
                for j in range(4):
                    a("v_fma_f32 v%d, v%d, s%d, -v%d" % (s0 + j, s0 + j, sC, vMC[qt]))
                for j in range(4):
                    a("v_exp_f32 v%d, v%d" % (s0 + j, s0 + j))
            for kt in range(2):
                s0 = S(kt, qt)
                a("v_cvt_pk_bf16_f32 v%d, v%d, v%d" % (P(qt) + 2 * kt, s0, s0 + 1))
                a("v_cvt_pk_bf16_f32 v%d, v%d, v%d" % (P(qt) + 2 * kt + 1, s0 + 2, s0 + 3))
        a("s_waitcnt lgkmcnt(0)")
        for qt in range(3):
            a("v_mfma_f32_16x16x32_bf16 %s, %s, %s, %s" % (ar(La(qt)), vr(ONES), vr(P(qt)), ar(La(qt))))
            for dt in range(8):
                a("v_mfma_f32_16x16x32_bf16 %s, %s, %s, %s" % (vr(O(dt, qt)), vr(Vf(dt)), vr(P(qt)), vr(O(dt, qt))))
        a("s_mov_b32 s%d, s%d" % (sPrev, sCur))
        a("s_add_u32 s%d, s%d, 32768" % (sCur, sCur))
        a("s_cmp_eq_u32 s%d, 163840" % sCur)
        a("s_cselect_b32 s%d, 0, s%d" % (sCur, sCur))
        a("s_sub_u32 s%d, s%d, s%d" % (sDelta, sCur, sPrev))
        for r in aK + aV:
            a("v_add_u32 v%d, s%d, v%d" % (r, sDelta, r))

    def rare(uid):
        a.lab("L_rare_%s" % uid)
        for qt in range(3):
            mx = vT[2 * qt]; t = vT[2 * qt + 1]
            a("v_mov_b32 v%d, v%d" % (t, mx))
            a("v_permlane16_swap_b32 v%d, v%d" % (t, mx))
            a("v_max_f32 v%d, v%d, v%d" % (mx, mx, t))
            a("v_mov_b32 v%d, v%d" % (t, mx))
            a("v_permlane32_swap_b32 v%d, v%d" % (t, mx))
            a("v_max_f32 v%d, v%d, v%d" % (mx, mx, t))
            a("v_max_f32 v%d, v%d, v%d" % (vM[qt], vM[qt], mx))
            a("v_mul_f32 v%d, s%d, v%d" % (t, sC, vM[qt]))
            a("v_sub_f32 v%d, v%d, v%d" % (mx, vMC[qt], t))
            a("v_exp_f32 v%d, v%d" % (mx, mx))
            a("v_mov_b32 v%d, v%d" % (vMC[qt], t))
            a("v_add_f32 v%d, s%d, v%d" % (vTH[qt], sThr, vM[qt]))
            for dt in range(8):
                for j in range(4):
                    a("v_mul_f32 v%d, v%d, v%d" % (O(dt, qt) + j, mx, O(dt, qt) + j))
            for j in range(4):
                a("v_accvgpr_read_b32 v%d, a%d" % (t, La(qt) + j))
                a("v_mul_f32 v%d, v%d, v%d" % (t, mx, t))
                a("v_accvgpr_write_b32 a%d, v%d" % (La(qt) + j, t))
        a("s_branch L_cont_%s" % uid)

    a.lab("L_loop")
    step(24, True, "m")
    a("s_add_u32 s%d, s%d, 1" % (sT, sT))
    a("s_cmp_lt_u32 s%d, 28" % sT)
    a("s_cbranch_scc1 L_loop")
    step(24, False, "t0")
    step(16, False, "t1")
    step(8, False, "t2")
    step(0, False, "t3")
    stamp(a, 2, opts)
    a("v_lshlrev_b32 v2, 4, v1")
    for qt in range(3):
        a("v_accvgpr_read_b32 v%d, a%d" % (vT[8], La(qt)))
        a("v_rcp_f32 v%d, v%d" % (vT[8], vT[8]))
        for s in range(4):
            d = Kf(s, 0) if qt != 1 else Kf(s, 1)
            for ab in range(2):
                o = O(2 * s + ab, qt)
                for j in range(4):
                    a("v_mul_f32 v%d, v%d, v%d" % (o + j, vT[8], o + j))
                a("v_cvt_pk_bf16_f32 v%d, v%d, v%d" % (d + 2 * ab, o, o + 1))
                a("v_cvt_pk_bf16_f32 v%d, v%d, v%d" % (d + 2 * ab + 1, o + 2, o + 3))
            a("buffer_store_dwordx4 %s, v2, s[%d:%d], s%d offen offset:%d%s" % (vr(d), SWS, SWS + 3, sO, s * 1024, OST))
        a("s_add_u32 s%d, s%d, 131072" % (sO, sO))
    if opts.get('stamps'):
        a("s_waitcnt vmcnt(0)")
        stamp(a, 3, opts)
        stamp_flush(a, 4, opts, sW, SWS, 2)
    a("s_endpgm")
    for uid in rare_blocks:
        rare(uid)
    a.lab("L_k1_end")
    a("s_endpgm")
    return a

def gen_k2(opts):
    a = G()
    DEPTH = opts.get('k2_depth', 8)
    NSLOT = 10
    WOF = opts.get('wo_flags', "")
    OLD = opts.get('ol_flags', "")
    vWd = 10; vO = 11; aA = [12, 13, 14, 15]
    ACC = lambda nt, qt: 16 + (nt * 3 + qt) * 4
    Af = lambda buf, nt: 64 + buf * 16 + nt * 4
    Bf = lambda slot, qt: 96 + (slot * 3 + qt) * 4
    vr = lambda b, n=4: "v[%d:%d]" % (b, b + n - 1)
    sW = 40; sRB = 41; sCB = 42; sWo = 43; sOo = [44, 45, 46]; sL = 47; sTmp = 48; sOut = 49
    SWO, SWS, SOUT = 20, 24, 28
    a(kernel_begin("oproj_kernel"))
    a("s_cmp_ge_u32 s2, 256")
    a("s_cbranch_scc1 L_k2_end")
    stamp(a, 0, opts)
    a("s_load_dwordx8 s[12:19], s[0:1], 32")
    a("v_lshrrev_b32 v2, 6, v0")
    a("v_and_b32 v1, 63, v0")
    a("v_readfirstlane_b32 s%d, v2" % sW)
    a("v_lshrrev_b32 v2, 4, v1")
    a("v_and_b32 v3, 7, v1")
    a("v_lshlrev_b32 v4, 1, v2")
    a("v_xor_b32 v3, v3, v4")
    a("v_lshlrev_b32 v3, 4, v3")
    a("v_lshrrev_b32 v4, 3, v1")
    a("v_lshl_add_u32 v%d, v4, 10, v3" % vWd)
    a("v_lshlrev_b32 v%d, 4, v1" % vO)
    a("v_and_b32 v3, 15, v1")
    a("v_lshrrev_b32 v5, 2, v3")
    a("v_and_b32 v6, 3, v1")
    a("v_lshl_add_u32 v4, v2, 2, v5")
    a("v_lshrrev_b32 v7, 1, v4")
    a("v_and_b32 v7, 3, v7")
    a("v_lshlrev_b32 v7, 5, v7")
    a("v_lshl_add_u32 v7, v4, 7, v7")
    a("v_lshl_add_u32 v7, v6, 3, v7")
    a("s_waitcnt lgkmcnt(0)")
    a("s_mul_i32 s%d, s%d, %d" % (sL, sW, NSLOT * 4096))
    a("v_add_u32 v%d, s%d, v7" % (aA[0], sL))
    for nt in range(1, 4):
        a("v_xor_b32 v%d, %d, v%d" % (aA[nt], nt << 5, aA[0]))
    srd(a, SWO, 12, 0x400000)
    srd(a, SWS, 18, 0x20000000)
    srd(a, SOUT, 14, 16 * 96 * 512 * 2)
    a("s_and_b32 s%d, s2, 7" % sTmp)
    a("s_lshr_b32 s3, s2, 3")
    a("s_lshr_b32 s%d, s%d, 1" % (sRB, sTmp))
    a("s_lshl_b32 s%d, s%d, 3" % (sRB, sRB))
    a("s_and_b32 s4, s3, 7")
    a("s_add_u32 s%d, s%d, s4" % (sRB, sRB))
    a("s_and_b32 s%d, s%d, 1" % (sCB, sTmp))
    a("s_lshl_b32 s%d, s%d, 2" % (sCB, sCB))
    a("s_lshr_b32 s4, s3, 3")
    a("s_add_u32 s%d, s%d, s4" % (sCB, sCB))
    a("s_lshl_b32 s%d, s%d, 20" % (sWo, sW))
    a("s_lshl_b32 s4, s%d, 7" % sCB)
    a("s_add_u32 s%d, s%d, s4" % (sWo, sWo))
    a("s_mul_i32 s%d, s%d, 3" % (sOo[0], sRB))
    a("s_lshl_b32 s%d, s%d, 17" % (sOo[0], sOo[0]))
    a("s_lshl_b32 s4, s%d, 15" % sW)
    a("s_add_u32 s%d, s%d, s4" % (sOo[0], sOo[0]))
    a("s_add_u32 s%d, s%d, 131072" % (sOo[1], sOo[0]))
    a("s_add_u32 s%d, s%d, 262144" % (sOo[2], sOo[0]))

    def issue(ks):
        slot = ks % NSLOT
        for jj in range(4):
            a("s_add_u32 m0, s%d, %d" % (sL, slot * 4096 + jj * 1024))
            a("s_add_u32 s%d, s%d, %d" % (sTmp, sWo, (32 * ks + 8 * jj) * 1024))
            a.vmem("buffer_load_dwordx4 v%d, s[%d:%d], s%d offen%s lds" % (vWd, SWO, SWO + 3, sTmp, WOF), "k%d" % ks)
        for qt in range(3):
            a("s_add_u32 s%d, s%d, %d" % (sTmp, sOo[qt], ks * 1024))
            a.vmem("buffer_load_dwordx4 %s, v%d, s[%d:%d], s%d offen%s" % (vr(Bf(ks % DEPTH, qt)), vO, SWS, SWS + 3, sTmp, OLD), "k%d" % ks)
    def areads(ks):
        slot = ks % NSLOT
        for nt in range(4):
            for u in range(2):
                a("ds_read_b64_tr_b16 %s, v%d offset:%d" % (vr(Af(ks & 1, nt) + 2 * u, 2), aA[nt], slot * 4096 + u * 2048))
    for ks in range(DEPTH):
        issue(ks)
    a.vwait("k0")
    areads(0)
    for ks in range(32):
        if ks + 1 < 32:
            a.vwait("k%d" % (ks + 1))
            areads(ks + 1)
            a("s_waitcnt lgkmcnt(8)")
        else:
            a("s_waitcnt lgkmcnt(0)")
        for nt in range(4):
            for qt in range(3):
                c = "0" if ks == 0 else vr(ACC(nt, qt))
                a("v_mfma_f32_16x16x32_bf16 %s, %s, %s, %s" % (vr(ACC(nt, qt)), vr(Af(ks & 1, nt)), vr(Bf(ks % DEPTH, qt)), c))
        if ks + DEPTH < 32:
            issue(ks + DEPTH)
    stamp(a, 1, opts)
    a("s_barrier")
    a("v_lshlrev_b32 v2, 4, v1")
    a("s_mul_i32 s3, s%d, 12288" % sW)
    a("v_add_u32 v3, s3, v2")
    for t in range(12):
        a("ds_write_b128 v3, %s offset:%d" % (vr(16 + 4 * t), t * 1024))
    a("s_waitcnt lgkmcnt(0)")
    a("s_barrier")
    a("s_mul_i32 s3, s%d, 3072" % sW)
    a("v_add_u32 v3, s3, v2")
    for qt in range(3):
        for ww in range(4):
            a("ds_read_b128 %s, v3 offset:%d" % (vr(64 + (qt * 4 + ww) * 4), ww * 12288 + qt * 1024))
    a("v_and_b32 v4, 15, v1")
    a("v_lshrrev_b32 v5, 4, v1")
    a("v_lshlrev_b32 v5, 3, v5")
    a("v_lshl_add_u32 v4, v4, 10, v5")
    a("s_mul_i32 s%d, s%d, %d" % (sOut, sRB, 48 * 1024))
    a("s_lshl_b32 s3, s%d, 7" % sCB)
    a("s_add_u32 s%d, s%d, s3" % (sOut, sOut))
    a("s_lshl_b32 s3, s%d, 5" % sW)
    a("s_add_u32 s%d, s%d, s3" % (sOut, sOut))
    for qt in range(3):
        a("s_waitcnt lgkmcnt(%d)" % (8 - 4 * qt))
        b = 64 + qt * 16
        for j in range(4):
            a("v_add_f32 v%d, v%d, v%d" % (b + j, b + j, b + 4 + j))
            a("v_add_f32 v%d, v%d, v%d" % (b + 8 + j, b + 8 + j, b + 12 + j))
        for j in range(4):
            a("v_add_f32 v%d, v%d, v%d" % (b + j, b + j, b + 8 + j))
        a("v_cvt_pk_bf16_f32 v%d, v%d, v%d" % (b, b, b + 1))
        a("v_cvt_pk_bf16_f32 v%d, v%d, v%d" % (b + 1, b + 2, b + 3))
        a("buffer_store_dwordx2 %s, v4, s[%d:%d], s%d offen" % (vr(b, 2), SOUT, SOUT + 3, sOut))
        a("s_add_u32 s%d, s%d, 16384" % (sOut, sOut))
    if opts.get('stamps'):
        a("s_waitcnt vmcnt(0)")
        stamp(a, 2, opts)
        stamp_flush(a, 3, opts, sW, SWS, 2, base_idx=4)
    a.lab("L_k2_end")
    a("s_endpgm")
    return a

def build(opts, verbose=False):
    k1 = gen_k1(opts); k2 = gen_k2(opts)
    txt = header(["kernel=attn_kernel grid=(256,1,1) block=(256,1,1) lds=163840",
                  "kernel=oproj_kernel grid=(256,1,1) block=(256,1,1) lds=163840"], opts.get('comment', ""))
    for nm, k in (("k1", k1), ("k2", k2)):
        lines, n = hazard.fix(k.lines, verbose, nm)
        errs = hazard.check_counters(lines, nm)
        for e in errs[:20]: print("ERR", e)
        if verbose: print(nm, "nops inserted:", n, "lines:", len(lines))
        txt += "\n".join(lines) + "\n"
    txt += descriptor("attn_kernel", 512, 96, 256)
    txt += descriptor("oproj_kernel", 256, 96, 256)
    return txt

if __name__ == "__main__":
    v = "-v" in sys.argv
    open("m1.s", "w").write(build(dict(), v))
    open("m1_st.s", "w").write(build(dict(stamps=True)))
    open("m1_nont.s", "w").write(build(dict(nt=False)))
```

```python
import re

REG = re.compile(r'^(v|a|s)(\d+)$')
RNG = re.compile(r'^(v|a|s)\[(\d+):(\d+)\]$')

def regs(tok):
    tok = tok.strip()
    neg = tok.startswith('-')
    if neg: tok = tok[1:]
    if tok.startswith('abs(') and tok.endswith(')'): tok = tok[4:-1]
    if tok.startswith('|') and tok.endswith('|'): tok = tok[1:-1]
    m = REG.match(tok)
    if m: return [(m.group(1), int(m.group(2)))]
    m = RNG.match(tok)
    if m: return [(m.group(1), i) for i in range(int(m.group(2)), int(m.group(3)) + 1)]
    if tok == 'vcc': return [('s', 'vcc')]
    if tok == 'exec': return [('s', 'exec')]
    if tok == 'm0': return [('s', 'm0')]
    return []

TRANS = ('v_exp_f32', 'v_log_f32', 'v_rcp_f32', 'v_rsq_f32', 'v_sqrt_f32', 'v_sin_f32', 'v_cos_f32')

class Ins:
    def __init__(self, line):
        self.line = line
        t = line.split(';')[0].strip()
        self.op = None
        self.kind = None
        self.w = []; self.r = []
        self.states = 1
        if not t or t.endswith(':') or t.startswith('.'):
            self.states = 0
            self.kind = 'label' if t.endswith(':') else 'none'
            return
        parts = t.split(None, 1)
        op = parts[0]; self.op = op
        rest = parts[1] if len(parts) > 1 else ''
        ops = [x.strip() for x in rest.split(',')] if rest else []
        mods = ''
        if ops:
            last = ops[-1].split()
            if last:
                ops[-1] = last[0]; mods = ' '.join(last[1:])
        self.ops = ops; self.mods = mods
        if op == 's_nop':
            self.kind = 'nop'; self.states = int(ops[0], 0) + 1; return
        if op.startswith('v_mfma'):
            self.kind = 'mfma'
            self.passes = 8 if '32x32' in op else 4
            self.D = regs(ops[0]); self.A = regs(ops[1]); self.B = regs(ops[2]); self.C = regs(ops[3])
            self.w = self.D; self.r = self.A + self.B + self.C
            return
        if op.startswith('v_'):
            self.kind = 'valu'
            self.trans = op.replace('_e32', '').replace('_e64', '') in TRANS
            if op.startswith('v_permlane') and 'swap' in op:
                self.w = regs(ops[0]) + regs(ops[1]); self.r = self.w[:]
            elif op.startswith('v_cmp'):
                self.w = regs(ops[0]); self.r = sum((regs(x) for x in ops[1:]), [])
            elif op.startswith('v_readfirstlane') or op.startswith('v_readlane'):
                self.w = regs(ops[0]); self.r = sum((regs(x) for x in ops[1:]), [])
            else:
                self.w = regs(ops[0]); self.r = sum((regs(x) for x in ops[1:]), [])
                if op.startswith('v_fmac') or op.startswith('v_writelane'):
                    self.r += self.w
                if op.startswith('v_add_co') or op.startswith('v_addc_co') or op.startswith('v_sub_co'):
                    self.w += regs(ops[1])
                if op.startswith('v_cndmask') and len(ops) == 3:
                    self.r += [('s', 'vcc')]
            return
        if op.startswith('ds_'):
            self.kind = 'ds'
            if op.startswith('ds_read') or op.startswith('ds_bpermute') or op.startswith('ds_swizzle'):
                self.w = regs(ops[0]); self.r = sum((regs(x) for x in ops[1:]), [])
                self.ld = True
            else:
                self.r = sum((regs(x) for x in ops), []); self.ld = False
            return
        if op.startswith('buffer_') or op.startswith('global_'):
            self.kind = 'vmem'
            self.lds = ' lds' in (' ' + mods)
            self.wide = False
            if op in ('buffer_wbl2', 'buffer_inv'):
                return
            if 'load' in op and not self.lds and 'load_lds' not in op:
                self.w = regs(ops[0]); self.r = sum((regs(x) for x in ops[1:]), [])
            elif 'load' in op:
                self.lds = True
                self.r = sum((regs(x) for x in ops), []) + [('s', 'm0')]
            elif 'atomic' in op:
                self.r = sum((regs(x) for x in ops), [])
                if 'sc0' in mods:
                    self.w = regs(ops[0])
            else:
                self.r = sum((regs(x) for x in ops), [])
                self.wide = ('x4' in op or 'x3' in op)
                self.data = regs(ops[0]) if op.startswith('buffer_') else regs(ops[1])
            return
        if op.startswith('s_'):
            self.kind = 'salu'
            if op in ('s_waitcnt', 's_barrier', 's_endpgm', 's_sleep', 's_setprio') or op.startswith('s_cbranch') or op == 's_branch':
                return
            if op.startswith('s_cmp'):
                self.r = sum((regs(x) for x in ops), []); return
            if op.startswith('s_load') or op.startswith('s_memrealtime') or op.startswith('s_memtime'):
                self.kind = 'smem'
            self.w = regs(ops[0]) if ops else []
            self.r = sum((regs(x) for x in ops[1:]), [])
            return
        raise ValueError("unknown instruction: " + line)

def isv(r): return r[0] in ('v', 'a')

def required(prev, cur):
    n = 0
    pw = set(prev.w); cw = set(cur.w); cr = set(cur.r)
    if prev.kind == 'valu':
        vw = {r for r in pw if isv(r)}
        sw = {r for r in pw if not isv(r)}
        if cur.kind == 'mfma' and vw & cr: n = max(n, 2)
        if cur.kind == 'valu':
            if prev.trans and not cur.trans and vw & cr: n = max(n, 1)
            if prev.trans and cur.trans and vw & cr: n = max(n, 1)
            if cur.op.startswith('v_permlane') and vw & cr: n = max(n, 2)
            if (cur.op.startswith('v_readfirstlane') or cur.op.startswith('v_readlane')) and vw & cr: n = max(n, 1)
            if 'dpp' in (cur.mods or '') or 'row_' in (cur.mods or '') or 'quad_perm' in (cur.mods or ''):
                if vw & cr: n = max(n, 2)
            if sw & cr: n = max(n, 2)
        if cur.kind == 'vmem' and sw & cr: n = max(n, 5)
        if cur.kind in ('salu',) and sw & cr: n = max(n, 4)
    if prev.kind == 'mfma':
        p = prev.passes
        D = set(prev.D)
        if cur.kind == 'mfma':
            if D & (set(cur.A) | set(cur.B)): n = max(n, 8 if p == 4 else 12)
            if D & set(cur.C):
                if list(cur.C) == list(prev.D) and cur.passes == p: pass
                else: n = max(n, 6 if p == 4 else 10)
            if D & set(cur.D) and list(cur.D) != list(prev.D): n = max(n, 6 if p == 4 else 10)
        elif cur.kind == 'valu':
            if D & (cr | cw): n = max(n, 8 if p == 4 else 12)
            if set(prev.C) & cw: n = max(n, 3 if p == 4 else 7)
        elif cur.kind in ('ds', 'vmem'):
            if D & (cr | cw): n = max(n, 8 if p == 4 else 12)
            if set(prev.C) & cw: n = max(n, 3 if p == 4 else 7)
    if prev.kind == 'vmem' and getattr(prev, 'wide', False):
        if cur.kind == 'valu' and set(prev.data) & cw: n = max(n, 2)
        elif cur.kind in ('mfma', 'ds', 'vmem') and set(prev.data) & cw: n = max(n, 2)
    if prev.kind == 'salu' and ('s', 'm0') in pw:
        if cur.kind == 'vmem' and getattr(cur, 'lds', False): n = max(n, 1)
    return n

def fix(lines, verbose=False, tag=''):
    out = []
    inserted = 0
    for line in lines:
        cur = Ins(line)
        if cur.states and cur.kind != 'nop':
            need = 0; dist = 0
            for prev in reversed(out):
                if dist >= 20: break
                if prev.states == 0: continue
                req = required(prev, cur)
                if req > dist: need = max(need, req - dist)
                dist += prev.states
            while need > 0:
                k = min(need, 16)
                out.append(Ins("s_nop %d" % (k - 1)))
                if verbose: print("  [hz%s] s_nop %d before: %s" % (tag, k - 1, line.strip()))
                inserted += k; need -= k
        out.append(cur)
    return [i.line for i in out], inserted

def check_counters(lines, name=''):
    lg = []
    vm = []
    errs = []
    smem = 0
    for n, line in enumerate(lines):
        i = Ins(line)
        if not i.states: continue
        if i.op == 's_waitcnt':
            t = line.split(';')[0]
            m = re.search(r'lgkmcnt\((\d+)\)', t)
            if m:
                k = int(m.group(1))
                while len(lg) > k: lg.pop(0)
            m = re.search(r'vmcnt\((\d+)\)', t)
            if m:
                k = int(m.group(1))
                while len(vm) > k: vm.pop(0)
            continue
        touched = set(i.r) | set(i.w)
        for q, nm in ((lg, 'lgkm'), (vm, 'vm')):
            for dst, l2 in q:
                if dst & touched:
                    errs.append("%s line %d: '%s' touches %s pending from '%s'" % (name, n, line.strip(), sorted(dst & touched)[:2], l2.strip()))
        if i.kind == 'ds':
            lg.append((set(i.w), line))
            if len(lg) > 15: errs.append("%s line %d: more than 15 LDS ops outstanding" % (name, n))
        elif i.kind == 'smem':
            lg.append((set(i.w), line))
        elif i.kind == 'vmem' and i.op not in ('buffer_wbl2', 'buffer_inv'):
            vm.append((set(i.w), line))
            if len(vm) > 63: errs.append("%s line %d: more than 63 VMEM ops outstanding" % (name, n))
    return errs

def lint_srd(text):
    errs = []
    kernels = re.split(r'\n(?=\w+_kernel:)', text)
    for k in kernels:
        used = set()
        for line in k.split('\n'):
            t = line.split(';')[0].strip()
            if t.startswith('buffer_'):
                for m in re.finditer(r's\[(\d+):(\d+)\]', t):
                    lo, hi = int(m.group(1)), int(m.group(2))
                    if hi - lo == 3: used.update(range(lo, hi + 1))
        cnt = {}
        for line in k.split('\n'):
            t = line.split(';')[0].strip()
            if not t or t.endswith(':') or t.startswith('.'): continue
            try: i = Ins(t)
            except ValueError: continue
            for r in i.w:
                if r[0] == 's' and r[1] in used:
                    cnt.setdefault(r[1], []).append(t)
        for r, l in cnt.items():
            if len(l) > 1: errs.append("SRD sgpr s%d written %d times: %s" % (r, len(l), l[:3]))
    return errs
```

```python
import sys, math
from asmlib import *
import hazard

C_SCALE = math.log2(math.e) / math.sqrt(128.0)
T_LOG2 = 8.0
import struct
def fbits(x): return struct.unpack("<I", struct.pack("<f", x))[0]

class G(Asm):
    def __init__(self):
        super().__init__()
        self.vm = []
    def vmem(self, s, tag):
        self(s); self.vm.append(tag)
    def vwait(self, tag, extra=""):
        idx = max(i for i, t in enumerate(self.vm) if t == tag)
        n = len(self.vm) - 1 - idx
        assert n <= 63, n
        self("s_waitcnt vmcnt(%d)%s" % (n, extra))
        self.vm = self.vm[idx + 1:]
        return n

def stamp(a, idx, opts):
    if not opts.get('stamps'): return
    a("s_memrealtime s[%d:%d]" % (80 + 2 * idx, 81 + 2 * idx))
    a("s_waitcnt lgkmcnt(0)")

def stamp_flush(a, n, opts, wave_s, ws_srd, wg_s, base_idx=0, nstamp=8):
    if not opts.get('stamps'): return
    l = a.uid("L_st%d" % base_idx)
    a("s_waitcnt lgkmcnt(0)")
    a("s_cmp_eq_u32 s%d, 0" % wave_s)
    a("s_cbranch_scc0 %s" % l)
    a("s_mul_i32 s3, s%d, %d" % (wg_s, nstamp * 8))
    a("s_add_u32 s3, s3, 0x%x" % (0x1F000000 + base_idx * 8))
    a("v_mov_b32 v2, 0")
    a("v_cmp_eq_u32 vcc, 0, v1")
    a("s_and_saveexec_b64 s[70:71], vcc")
    for i in range(n):
        a("v_mov_b32 v4, s%d" % (80 + 2 * i))
        a("v_mov_b32 v5, s%d" % (81 + 2 * i))
        a("buffer_store_dwordx2 v[4:5], v2, s[%d:%d], s3 offen offset:%d" % (ws_srd, ws_srd + 3, i * 8))
        a("s_waitcnt vmcnt(0)")
    a("s_mov_b64 exec, s[70:71]")
    a.lab(l)

def gen_k1(opts):
    a = G()
    NT = " nt" if opts.get('nt', True) else ""
    WNT = opts.get('wq_flags', "")
    XNT = opts.get('x_flags', "")
    OST = opts.get('o_flags', "")
    vKd = [10, 11, 12, 13]; vVd = [14, 15]; vWd = 16; vXd = [17, 9]; aX = [7, 8]
    aK = [18, 19, 20, 21]; aV = list(range(22, 30)); aW = [30, 31, 32, 33]
    vM = [34, 35, 36]; vMC = [37, 38, 39]; vTH = [40, 41, 42]
    vT = list(range(43, 52))
    S = lambda kt, qt: 52 + (kt * 3 + qt) * 4
    P = lambda qt: 76 + 4 * qt
    Kf = lambda s, kt: 88 + (s * 2 + kt) * 4
    Vf = lambda dt: 120 + 4 * dt
    O = lambda dt, qt: 152 + (dt * 3 + qt) * 4
    ONES = 248
    Qa = lambda s, qt: (s * 3 + qt) * 4
    La = lambda qt: 48 + 4 * qt
    Xa = lambda s, qt: 64 + (s * 3 + qt) * 4
    Wf = lambda buf, dt: 88 + buf * 32 + dt * 4
    vr = lambda b, n=4: "v[%d:%d]" % (b, b + n - 1)
    ar = lambda b, n=4: "a[%d:%d]" % (b, b + n - 1)
    sW = 40; sH = 41; sB = 42; sQH = 43
    sKV = 44
    sCur = 45; sPrev = 46; sDelta = 47; sWoff = 48; sT = 49
    sXo = [50, 51, 52]; sWq = 53; sC = 54; sTmp = 55; sTmp2 = 56; sThr = 57; sO = 58; sW2k = 59; sW6k = 60
    SX, SK, SV, SWQ, SWS = 20, 24, 28, 32, 36

    a(kernel_begin("attn_kernel"))
    a("s_cmp_ge_u32 s2, 256")
    a("s_cbranch_scc1 L_k1_end")
    stamp(a, 0, opts)
    a("s_load_dwordx16 s[4:19], s[0:1], 0")
    a("v_lshrrev_b32 v2, 6, v0")
    a("v_and_b32 v1, 63, v0")
    a("v_readfirstlane_b32 s%d, v2" % sW)
    a("v_lshrrev_b32 v2, 4, v1")
    a("v_and_b32 v3, 15, v1")
    for jj in range(4):
        a("v_add_u32 v4, %d, v2" % (4 * jj))
        a("v_xor_b32 v4, v3, v4")
        a("v_lshlrev_b32 v4, 4, v4")
        a("v_lshl_add_u32 v%d, v2, 8, v4" % vKd[jj])
    for jp in range(2):
        a("v_add_u32 v4, %d, v2" % (4 * jp))
        a("v_lshlrev_b32 v4, 1, v4")
        a("v_xor_b32 v4, v3, v4")
        a("v_lshlrev_b32 v4, 4, v4")
        a("v_lshl_add_u32 v%d, v2, 8, v4" % vVd[jp])
    a("v_lshlrev_b32 v4, 2, v2")
    a("v_xor_b32 v4, v3, v4")
    a("v_lshlrev_b32 v4, 4, v4")
    a("v_lshl_add_u32 v%d, v2, 13, v4" % vWd)
    a("v_and_b32 v5, 7, v1")
    a("v_lshrrev_b32 v6, 3, v1")
    for jp in range(2):
        a("v_add_u32 v4, %d, v2" % (4 * jp))
        a("v_xor_b32 v4, v5, v4")
        a("v_lshlrev_b32 v4, 4, v4")
        a("v_lshl_add_u32 v%d, v6, 10, v4" % vXd[jp])
    a("s_waitcnt lgkmcnt(0)")
    srd(a, SX, 4, 16 * 96 * 512 * 2)
    srd(a, SK, 6, 0x8000000)
    srd(a, SV, 8, 0x8000000)
    srd(a, SWQ, 10, 0x400000)
    srd(a, SWS, 18, 0x20000000)
    a("s_and_b32 s%d, s2, 7" % sTmp)
    a("s_lshr_b32 s%d, s2, 3" % sTmp2)
    a("s_and_b32 s%d, s%d, 3" % (sH, sTmp))
    a("s_lshl_b32 s%d, s%d, 3" % (sH, sH))
    a("s_and_b32 s3, s%d, 7" % sTmp2)
    a("s_add_u32 s%d, s%d, s3" % (sH, sH))
    a("s_lshr_b32 s%d, s%d, 2" % (sB, sTmp))
    a("s_lshl_b32 s%d, s%d, 3" % (sB, sB))
    a("s_lshr_b32 s3, s%d, 3" % sTmp2)
    a("s_lshl_b32 s3, s3, 1")
    a("s_add_u32 s%d, s%d, s3" % (sB, sB))
    a("s_lshr_b32 s3, s%d, 1" % sW)
    a("s_add_u32 s%d, s%d, s3" % (sB, sB))
    a("s_and_b32 s%d, s%d, 1" % (sQH, sW))
    a("s_lshl_b32 s%d, s3, 14" % sWoff)
    a("s_lshl_b32 s3, s%d, 12" % sQH)
    a("s_add_u32 s%d, s%d, s3" % (sWoff, sWoff))
    a("s_lshl_b32 s%d, s%d, 5" % (sKV, sB))
    a("s_add_u32 s%d, s%d, s%d" % (sKV, sKV, sH))
    a("s_lshl_b32 s%d, s%d, 18" % (sKV, sKV))
    a("s_add_u32 s%d, s%d, s3" % (sKV, sKV))
    a("s_mul_i32 s%d, s%d, 96" % (sXo[0], sB))
    a("s_mul_i32 s3, s%d, 48" % sQH)
    a("s_add_u32 s%d, s%d, s3" % (sXo[0], sXo[0]))
    a("s_lshl_b32 s%d, s%d, 10" % (sXo[0], sXo[0]))
    a("s_add_u32 s%d, s%d, 16384" % (sXo[1], sXo[0]))
    a("s_add_u32 s%d, s%d, 32768" % (sXo[2], sXo[0]))
    a("s_lshl_b32 s%d, s%d, 16" % (sWq, sW))
    a("s_lshl_b32 s3, s%d, 8" % sH)
    a("s_add_u32 s%d, s%d, s3" % (sWq, sWq))
    a("s_mul_i32 s%d, s%d, 6" % (sO, sB))
    a("s_mul_i32 s3, s%d, 3" % sQH)
    a("s_add_u32 s%d, s%d, s3" % (sO, sO))
    a("s_lshl_b32 s%d, s%d, 17" % (sO, sO))
    a("s_lshl_b32 s3, s%d, 12" % sH)
    a("s_add_u32 s%d, s%d, s3" % (sO, sO))

    def cbase(c): return 32768 + 40960 * ((c + 1) % 3)
    def issue_C(c):
        for tl in range(2):
            for jj in range(2):
                a("s_add_u32 m0, s%d, %d" % (sW2k, cbase(c) + tl * 8192 + jj * 1024))
                a("s_add_u32 s%d, s%d, %d" % (sTmp, sWq, (32 * (2 * c + tl) + 4 * jj) * 8192))
                a.vmem("buffer_load_dwordx4 v%d, s[%d:%d], s%d offen%s lds" % (vWd, SWQ, SWQ + 3, sTmp, WNT), "C%d" % c)
        for j in range(6):
            a("s_add_u32 m0, s%d, %d" % (sW6k, cbase(c) + 16384 + j * 1024))
            a("s_add_u32 s%d, s%d, %d" % (sTmp, sXo[0], 8 * j * 1024 + c * 128))
            a.vmem("buffer_load_dwordx4 v%d, s[%d:%d], s%d offen%s lds" % (vXd[j & 1], SX, SX + 3, sTmp, XNT), "C%d" % c)

    def issue_KV(tag, slot_sgpr=None, slot_const=None):
        if slot_sgpr is not None:
            a("s_add_u32 m0, s%d, s%d" % (slot_sgpr, sWoff))
        else:
            a("s_add_u32 m0, s%d, %d" % (sWoff, slot_const))
        a("s_nop 0")
        for jj in range(4):
            a.vmem("buffer_load_dwordx4 v%d, s[%d:%d], s%d offen offset:%d%s lds" % (vKd[jj], SK, SK + 3, sKV, jj * 1024, NT), tag)
        a("s_add_u32 m0, m0, 8192")
        a("s_nop 0")
        for jj in range(4):
            a.vmem("buffer_load_dwordx4 v%d, s[%d:%d], s%d offen offset:%d%s lds" % (vVd[jj & 1], SV, SV + 3, sKV, jj * 1024, NT), tag)
        a("s_add_u32 s%d, s%d, 8192" % (sKV, sKV))

    a("s_lshl_b32 s%d, s%d, 11" % (sW2k, sW))
    a("s_mul_i32 s%d, s%d, 6144" % (sW6k, sW))
    issue_C(0); issue_C(1); issue_C(2)
    issue_KV("KV0", slot_const=0)
    a("v_lshrrev_b32 v5, 2, v3")
    a("v_and_b32 v6, 3, v1")
    a("s_lshr_b32 s3, s%d, 1" % sW)
    a("s_lshl_b32 s3, s3, 14")
    for s in range(4):
        a("v_add_u32 v4, %d, v2" % (4 * s))
        a("v_xor_b32 v4, v4, v3")
        a("v_lshlrev_b32 v4, 4, v4")
        a("v_lshl_add_u32 v4, v3, 8, v4")
        a("v_add_u32 v%d, s3, v4" % aK[s])
    a("v_lshl_add_u32 v4, v2, 2, v5")
    a("v_and_b32 v7, 7, v4")
    a("v_lshlrev_b32 v7, 5, v7")
    a("v_lshl_add_u32 v7, v4, 8, v7")
    a("v_lshl_add_u32 v7, v6, 3, v7")
    a("s_add_u32 s3, s3, 8192")
    a("v_add_u32 v%d, s3, v7" % aV[0])
    for dt in range(1, 8):
        a("v_xor_b32 v%d, %d, v%d" % (aV[dt], dt << 5, aV[0]))
    a("v_lshl_add_u32 v4, v2, 3, v5")
    a("v_lshlrev_b32 v4, 8, v4")
    a("v_lshl_add_u32 v4, v6, 4, v4")
    for sp in range(4):
        a("v_xor_b32 v7, %d, v5" % sp)
        a("v_lshl_add_u32 v%d, v7, 6, v4" % aW[sp])
    a("v_lshrrev_b32 v4, 1, v3")
    a("s_add_u32 s3, s%d, 16384" % sW6k)
    for ks in range(2):
        a("v_add_u32 v5, %d, v2" % (4 * ks))
        a("v_xor_b32 v5, v5, v4")
        a("v_lshlrev_b32 v5, 4, v5")
        a("v_lshl_add_u32 v5, v3, 7, v5")
        a("v_add_u32 v%d, s3, v5" % aX[ks])
    a("s_mov_b32 s%d, 0x%x" % (sC, fbits(C_SCALE)))
    a("s_mov_b32 s%d, 0x%x" % (sThr, fbits(T_LOG2 / C_SCALE)))
    for i in range(4):
        a("v_mov_b32 v%d, 0x3f803f80" % (ONES + i))
    for qt in range(3):
        a("v_mov_b32 v%d, 0xff800000" % vM[qt])
        a("v_mov_b32 v%d, 0xff800000" % vMC[qt])
        a("v_mov_b32 v%d, 0xff800000" % vTH[qt])

    Xf = lambda ks, qt: 52 + (ks * 3 + qt) * 4
    tW = [vT[0], vT[1], vT[2], vT[3]]; tX = [vT[4], vT[5]]
    def wq_reads(tl, buf, half):
        for sp in (2 * half, 2 * half + 1):
            for ab in range(2):
                dt = 2 * sp + ab
                for u in range(2):
                    a("ds_read_b64_tr_b16 %s, v%d offset:%d" % (vr(Wf(buf, dt) + 2 * u, 2), tW[sp], tl * 8192 + u * 1024 + ab * 8))

    def q_mfmas(s, ks, buf, dts):
        for dt in dts:
            for qt in range(3):
                c = "0" if s == 0 else vr(O(dt, qt))
                a("v_mfma_f32_16x16x32_bf16 %s, %s, %s, %s" % (vr(O(dt, qt)), vr(Wf(buf, dt)), vr(Xf(ks, qt)), c))

    def compute_C(c):
        for sp in range(4):
            a("v_add_u32 v%d, %d, v%d" % (tW[sp], cbase(c), aW[sp]))
        for ks in range(2):
            a("v_add_u32 v%d, %d, v%d" % (tX[ks], cbase(c), aX[ks]))
        for qt in range(3):
            a("ds_read_b128 %s, v%d offset:%d" % (vr(Xf(0, qt)), tX[0], qt * 2048))
        wq_reads(0, 0, 0)
        a("s_waitcnt lgkmcnt(3)")
        wq_reads(0, 0, 1)
        q_mfmas(2 * c, 0, 0, range(0, 2))
        a("s_waitcnt lgkmcnt(8)")
        q_mfmas(2 * c, 0, 0, range(2, 4))
        a("s_waitcnt lgkmcnt(4)")
        for qt in range(3):
            a("ds_read_b128 %s, v%d offset:%d" % (vr(Xf(1, qt)), tX[1], qt * 2048))
        wq_reads(1, 1, 0)
        q_mfmas(2 * c, 0, 0, range(4, 6))
        a("s_waitcnt lgkmcnt(11)")
        q_mfmas(2 * c, 0, 0, range(6, 8))
        a("s_waitcnt lgkmcnt(4)")
        wq_reads(1, 1, 1)
        q_mfmas(2 * c + 1, 1, 1, range(0, 2))
        a("s_waitcnt lgkmcnt(8)")
        q_mfmas(2 * c + 1, 1, 1, range(2, 4))
        a("s_waitcnt lgkmcnt(4)")
        q_mfmas(2 * c + 1, 1, 1, range(4, 6))
        a("s_waitcnt lgkmcnt(0)")
        q_mfmas(2 * c + 1, 1, 1, range(6, 8))

    for c in range(8):
        a.vwait("C%d" % c)
        if c in (0, 3, 5, 7): stamp(a, {0: 1, 3: 2, 5: 3, 7: 4}[c], opts)
        a("s_barrier")
        if 1 <= c <= 5: issue_C(c + 2)
        if c == 6: issue_KV("KV1", slot_const=32768)
        if c == 7: issue_KV("KV2", slot_const=65536)
        compute_C(c)
    a("s_barrier")
    issue_KV("KV3", slot_const=98304)
    for sp in range(4):
        for qt in range(3):
            for ab in range(2):
                o = O(2 * sp + ab, qt)
                a("v_cvt_pk_bf16_f32 v%d, v%d, v%d" % (vT[0 + 2 * ab], o, o + 1))
                a("v_cvt_pk_bf16_f32 v%d, v%d, v%d" % (vT[1 + 2 * ab], o + 2, o + 3))
            for i in range(4):
                a("v_accvgpr_write_b32 a%d, v%d" % (Qa(sp, qt) + i, vT[i]))
    for i in range(96):
        a("v_mov_b32 v%d, 0" % (152 + i))
    for i in range(12):
        a("v_accvgpr_write_b32 a%d, 0" % (48 + i))
    stamp(a, 5, opts)
    a("s_mov_b32 s%d, 0" % sCur)
    a("s_mov_b32 s%d, 131072" % sPrev)
    a("s_mov_b32 s%d, 0" % sT)
    assert a.vm[-24:] == ["KV1"] * 8 + ["KV2"] * 8 + ["KV3"] * 8 and len(a.vm) <= 32, a.vm

    rare_blocks = []
    def step(vmn, dma, uid):
        a("s_waitcnt vmcnt(%d)" % vmn)
        a("s_barrier")
        for s in range(4):
            for kt in range(2):
                a("ds_read_b128 %s, v%d offset:%d" % (vr(Kf(s, kt)), aK[s], kt * 4096))
        if dma:
            issue_KV("KVx", slot_sgpr=sPrev)
        def vreads(dts):
            for dt in dts:
                for u in range(2):
                    a("ds_read_b64_tr_b16 %s, v%d offset:%d" % (vr(Vf(dt) + 2 * u, 2), aV[dt], u * 4096))
        for s in range(4):
            a("s_waitcnt lgkmcnt(%d)" % (6 - 2 * s))
            if s == 3: vreads(range(0, 3))
            for kt in range(2):
                for qt in range(3):
                    c = "0" if s == 0 else vr(S(kt, qt))
                    a("v_mfma_f32_16x16x32_bf16 %s, %s, %s, %s" % (vr(S(kt, qt)), vr(Kf(s, kt)), ar(Qa(s, qt)), c))
        vreads(range(3, 7))
        a("s_waitcnt lgkmcnt(12)")
        vreads(range(7, 8))
        for qt in range(3):
            s0, s1 = S(0, qt), S(1, qt)
            t0, t1 = vT[2 * qt], vT[2 * qt + 1]
            a("v_max3_f32 v%d, v%d, v%d, v%d" % (t0, s0, s0 + 1, s0 + 2))
            a("v_max3_f32 v%d, v%d, v%d, v%d" % (t1, s0 + 3, s1, s1 + 1))
            a("v_max3_f32 v%d, v%d, v%d, v%d" % (t0, t0, s1 + 2, s1 + 3))
            a("v_max_f32 v%d, v%d, v%d" % (t0, t0, t1))
            a("v_sub_f32 v%d, v%d, v%d" % (t1, t0, vTH[qt]))
        a("v_max3_f32 v%d, v%d, v%d, v%d" % (vT[6], vT[1], vT[3], vT[5]))
        a("v_cmp_lt_f32 vcc, 0, v%d" % vT[6])
        a("s_cbranch_vccnz L_rare_%s" % uid)
        a.lab("L_cont_%s" % uid)
        rare_blocks.append(uid)
        for qt in range(3):
            for kt in range(2):
                s0 = S(kt, qt)
                for j in range(4):
                    a("v_fma_f32 v%d, v%d, s%d, -v%d" % (s0 + j, s0 + j, sC, vMC[qt]))
                for j in range(4):
                    a("v_exp_f32 v%d, v%d" % (s0 + j, s0 + j))
            for kt in range(2):
                s0 = S(kt, qt)
                a("v_cvt_pk_bf16_f32 v%d, v%d, v%d" % (P(qt) + 2 * kt, s0, s0 + 1))
                a("v_cvt_pk_bf16_f32 v%d, v%d, v%d" % (P(qt) + 2 * kt + 1, s0 + 2, s0 + 3))
        a("s_waitcnt lgkmcnt(0)")
        for qt in range(3):
            a("v_mfma_f32_16x16x32_bf16 %s, %s, %s, %s" % (ar(La(qt)), vr(ONES), vr(P(qt)), ar(La(qt))))
            for dt in range(8):
                a("v_mfma_f32_16x16x32_bf16 %s, %s, %s, %s" % (vr(O(dt, qt)), vr(Vf(dt)), vr(P(qt)), vr(O(dt, qt))))
        a("s_mov_b32 s%d, s%d" % (sPrev, sCur))
        a("s_add_u32 s%d, s%d, 32768" % (sCur, sCur))
        a("s_cmp_eq_u32 s%d, 163840" % sCur)
        a("s_cselect_b32 s%d, 0, s%d" % (sCur, sCur))
        a("s_sub_u32 s%d, s%d, s%d" % (sDelta, sCur, sPrev))
        for r in aK + aV:
            a("v_add_u32 v%d, s%d, v%d" % (r, sDelta, r))

    def rare(uid):
        a.lab("L_rare_%s" % uid)
        for qt in range(3):
            mx = vT[2 * qt]; t = vT[2 * qt + 1]
            a("v_mov_b32 v%d, v%d" % (t, mx))
            a("v_permlane16_swap_b32 v%d, v%d" % (t, mx))
            a("v_max_f32 v%d, v%d, v%d" % (mx, mx, t))
            a("v_mov_b32 v%d, v%d" % (t, mx))
            a("v_permlane32_swap_b32 v%d, v%d" % (t, mx))
            a("v_max_f32 v%d, v%d, v%d" % (mx, mx, t))
            a("v_max_f32 v%d, v%d, v%d" % (vM[qt], vM[qt], mx))
            a("v_mul_f32 v%d, s%d, v%d" % (t, sC, vM[qt]))
            a("v_sub_f32 v%d, v%d, v%d" % (mx, vMC[qt], t))
            a("v_exp_f32 v%d, v%d" % (mx, mx))
            a("v_mov_b32 v%d, v%d" % (vMC[qt], t))
            a("v_add_f32 v%d, s%d, v%d" % (vTH[qt], sThr, vM[qt]))
            for dt in range(8):
                for j in range(4):
                    a("v_mul_f32 v%d, v%d, v%d" % (O(dt, qt) + j, mx, O(dt, qt) + j))
            for j in range(4):
                a("v_accvgpr_read_b32 v%d, a%d" % (t, La(qt) + j))
                a("v_mul_f32 v%d, v%d, v%d" % (t, mx, t))
                a("v_accvgpr_write_b32 a%d, v%d" % (La(qt) + j, t))
        a("s_branch L_cont_%s" % uid)

    a.lab("L_loop")
    step(24, True, "m")
    a("s_add_u32 s%d, s%d, 1" % (sT, sT))
    a("s_cmp_lt_u32 s%d, 28" % sT)
    a("s_cbranch_scc1 L_loop")
    step(24, False, "t0")
    step(16, False, "t1")
    step(8, False, "t2")
    step(0, False, "t3")
    stamp(a, 6, opts)
    a("v_lshlrev_b32 v2, 4, v1")
    for qt in range(3):
        a("v_accvgpr_read_b32 v%d, a%d" % (vT[8], La(qt)))
        a("v_rcp_f32 v%d, v%d" % (vT[8], vT[8]))
        for s in range(4):
            d = Kf(s, 0) if qt != 1 else Kf(s, 1)
            for ab in range(2):
                o = O(2 * s + ab, qt)
                for j in range(4):
                    a("v_mul_f32 v%d, v%d, v%d" % (o + j, vT[8], o + j))
                a("v_cvt_pk_bf16_f32 v%d, v%d, v%d" % (d + 2 * ab, o, o + 1))
                a("v_cvt_pk_bf16_f32 v%d, v%d, v%d" % (d + 2 * ab + 1, o + 2, o + 3))
            a("buffer_store_dwordx4 %s, v2, s[%d:%d], s%d offen offset:%d%s" % (vr(d), SWS, SWS + 3, sO, s * 1024, OST))
        a("s_add_u32 s%d, s%d, 131072" % (sO, sO))
    if opts.get('stamps'):
        a("s_waitcnt vmcnt(0)")
        stamp(a, 7, opts)
        stamp_flush(a, 8, opts, sW, SWS, 2, nstamp=12)
    a("s_endpgm")
    for uid in rare_blocks:
        rare(uid)
    a.lab("L_k1_end")
    a("s_endpgm")
    return a

def gen_k2(opts):
    a = G()
    DEPTH = opts.get('k2_depth', 8)
    NSLOT = 10
    WOF = opts.get('wo_flags', "")
    OLD = opts.get('ol_flags', "")
    vWd = 10; vO = 11; aA = [12, 13, 14, 15]
    ACC = lambda nt, qt: 16 + (nt * 3 + qt) * 4
    Af = lambda buf, nt: 64 + buf * 16 + nt * 4
    Bf = lambda slot, qt: 96 + (slot * 3 + qt) * 4
    vr = lambda b, n=4: "v[%d:%d]" % (b, b + n - 1)
    sW = 40; sRB = 41; sCB = 42; sWo = 43; sOo = [44, 45, 46]; sL = 47; sTmp = 48; sOut = 49
    SWO, SWS, SOUT = 20, 24, 28
    a(kernel_begin("oproj_kernel"))
    a("s_cmp_ge_u32 s2, 256")
    a("s_cbranch_scc1 L_k2_end")
    stamp(a, 0, opts)
    a("s_load_dwordx8 s[12:19], s[0:1], 32")
    a("v_lshrrev_b32 v2, 6, v0")
    a("v_and_b32 v1, 63, v0")
    a("v_readfirstlane_b32 s%d, v2" % sW)
    a("v_lshrrev_b32 v2, 4, v1")
    a("v_and_b32 v3, 7, v1")
    a("v_lshlrev_b32 v4, 1, v2")
    a("v_xor_b32 v3, v3, v4")
    a("v_lshlrev_b32 v3, 4, v3")
    a("v_lshrrev_b32 v4, 3, v1")
    a("v_lshl_add_u32 v%d, v4, 10, v3" % vWd)
    a("v_lshlrev_b32 v%d, 4, v1" % vO)
    a("v_and_b32 v3, 15, v1")
    a("v_lshrrev_b32 v5, 2, v3")
    a("v_and_b32 v6, 3, v1")
    a("v_lshl_add_u32 v4, v2, 2, v5")
    a("v_lshrrev_b32 v7, 1, v4")
    a("v_and_b32 v7, 3, v7")
    a("v_lshlrev_b32 v7, 5, v7")
    a("v_lshl_add_u32 v7, v4, 7, v7")
    a("v_lshl_add_u32 v7, v6, 3, v7")
    a("s_waitcnt lgkmcnt(0)")
    a("s_mul_i32 s%d, s%d, %d" % (sL, sW, NSLOT * 4096))
    a("v_add_u32 v%d, s%d, v7" % (aA[0], sL))
    for nt in range(1, 4):
        a("v_xor_b32 v%d, %d, v%d" % (aA[nt], nt << 5, aA[0]))
    srd(a, SWO, 12, 0x400000)
    srd(a, SWS, 18, 0x20000000)
    srd(a, SOUT, 14, 16 * 96 * 512 * 2)
    a("s_and_b32 s%d, s2, 7" % sTmp)
    a("s_lshr_b32 s3, s2, 3")
    a("s_lshr_b32 s%d, s%d, 1" % (sRB, sTmp))
    a("s_lshl_b32 s%d, s%d, 3" % (sRB, sRB))
    a("s_and_b32 s4, s3, 7")
    a("s_add_u32 s%d, s%d, s4" % (sRB, sRB))
    a("s_and_b32 s%d, s%d, 1" % (sCB, sTmp))
    a("s_lshl_b32 s%d, s%d, 2" % (sCB, sCB))
    a("s_lshr_b32 s4, s3, 3")
    a("s_add_u32 s%d, s%d, s4" % (sCB, sCB))
    a("s_lshl_b32 s%d, s%d, 20" % (sWo, sW))
    a("s_lshl_b32 s4, s%d, 7" % sCB)
    a("s_add_u32 s%d, s%d, s4" % (sWo, sWo))
    a("s_mul_i32 s%d, s%d, 3" % (sOo[0], sRB))
    a("s_lshl_b32 s%d, s%d, 17" % (sOo[0], sOo[0]))
    a("s_lshl_b32 s4, s%d, 15" % sW)
    a("s_add_u32 s%d, s%d, s4" % (sOo[0], sOo[0]))
    a("s_add_u32 s%d, s%d, 131072" % (sOo[1], sOo[0]))
    a("s_add_u32 s%d, s%d, 262144" % (sOo[2], sOo[0]))

    ROT = opts.get('k2_rot', False)
    if ROT:
        a("s_lshr_b32 s50, s2, 3")
        a("s_mul_i32 s50, s50, 5")
        a("s_mul_i32 s51, s%d, 8" % sW)
        a("s_add_u32 s50, s50, s51")
        a("s_and_b32 s50, s50, 31")
    def issue(ks):
        slot = ks % NSLOT
        if ROT:
            a("s_add_u32 s51, s50, %d" % ks)
            a("s_and_b32 s51, s51, 31")
            a("s_lshl_b32 s52, s51, 15")
            a("s_add_u32 s52, s52, s%d" % sWo)
            a("s_lshl_b32 s51, s51, 10")
            for jj in range(4):
                if opts.get('skip_wo'): continue
                a("s_add_u32 m0, s%d, %d" % (sL, slot * 4096 + jj * 1024))
                a("s_add_u32 s%d, s52, %d" % (sTmp, 8 * jj * 1024))
                a.vmem("buffer_load_dwordx4 v%d, s[%d:%d], s%d offen%s lds" % (vWd, SWO, SWO + 3, sTmp, WOF), "k%d" % ks)
            for qt in range(3):
                if opts.get('skip_o'): continue
                a("s_add_u32 s%d, s%d, s51" % (sTmp, sOo[qt]))
                a.vmem("buffer_load_dwordx4 %s, v%d, s[%d:%d], s%d offen%s" % (vr(Bf(ks % DEPTH, qt)), vO, SWS, SWS + 3, sTmp, OLD), "k%d" % ks)
            return
        for jj in range(4):
            if opts.get('skip_wo'): continue
            a("s_add_u32 m0, s%d, %d" % (sL, slot * 4096 + jj * 1024))
            a("s_add_u32 s%d, s%d, %d" % (sTmp, sWo, (32 * ks + 8 * jj) * 1024))
            a.vmem("buffer_load_dwordx4 v%d, s[%d:%d], s%d offen%s lds" % (vWd, SWO, SWO + 3, sTmp, WOF), "k%d" % ks)
        for qt in range(3):
            if opts.get('skip_o'): continue
            a("s_add_u32 s%d, s%d, %d" % (sTmp, sOo[qt], ks * 1024))
            a.vmem("buffer_load_dwordx4 %s, v%d, s[%d:%d], s%d offen%s" % (vr(Bf(ks % DEPTH, qt)), vO, SWS, SWS + 3, sTmp, OLD), "k%d" % ks)
    def areads(ks):
        slot = ks % NSLOT
        for nt in range(4):
            for u in range(2):
                a("ds_read_b64_tr_b16 %s, v%d offset:%d" % (vr(Af(ks & 1, nt) + 2 * u, 2), aA[nt], slot * 4096 + u * 2048))
    for ks in range(DEPTH):
        issue(ks)
    a.vwait("k0")
    areads(0)
    for ks in range(32):
        if ks + 1 < 32:
            a.vwait("k%d" % (ks + 1), " lgkmcnt(0)")
            areads(ks + 1)
        else:
            a("s_waitcnt lgkmcnt(0)")
        for nt in range(4):
            for qt in range(3):
                c = "0" if ks == 0 else vr(ACC(nt, qt))
                a("v_mfma_f32_16x16x32_bf16 %s, %s, %s, %s" % (vr(ACC(nt, qt)), vr(Af(ks & 1, nt)), vr(Bf(ks % DEPTH, qt)), c))
        if ks + DEPTH < 32:
            issue(ks + DEPTH)
    stamp(a, 1, opts)
    a("s_barrier")
    a("v_lshlrev_b32 v2, 4, v1")
    a("s_mul_i32 s3, s%d, 12288" % sW)
    a("v_add_u32 v3, s3, v2")
    for t in range(12):
        a("ds_write_b128 v3, %s offset:%d" % (vr(16 + 4 * t), t * 1024))
    a("s_waitcnt lgkmcnt(0)")
    a("s_barrier")
    a("s_mul_i32 s3, s%d, 3072" % sW)
    a("v_add_u32 v3, s3, v2")
    for qt in range(3):
        for ww in range(4):
            a("ds_read_b128 %s, v3 offset:%d" % (vr(64 + (qt * 4 + ww) * 4), ww * 12288 + qt * 1024))
    a("v_and_b32 v4, 15, v1")
    a("v_lshrrev_b32 v5, 4, v1")
    a("v_lshlrev_b32 v5, 3, v5")
    a("v_lshl_add_u32 v4, v4, 10, v5")
    a("s_mul_i32 s%d, s%d, %d" % (sOut, sRB, 48 * 1024))
    a("s_lshl_b32 s3, s%d, 7" % sCB)
    a("s_add_u32 s%d, s%d, s3" % (sOut, sOut))
    a("s_lshl_b32 s3, s%d, 5" % sW)
    a("s_add_u32 s%d, s%d, s3" % (sOut, sOut))
    for qt in range(3):
        a("s_waitcnt lgkmcnt(%d)" % (8 - 4 * qt))
        b = 64 + qt * 16
        for j in range(4):
            a("v_add_f32 v%d, v%d, v%d" % (b + j, b + j, b + 4 + j))
            a("v_add_f32 v%d, v%d, v%d" % (b + 8 + j, b + 8 + j, b + 12 + j))
        for j in range(4):
            a("v_add_f32 v%d, v%d, v%d" % (b + j, b + j, b + 8 + j))
        a("v_cvt_pk_bf16_f32 v%d, v%d, v%d" % (b, b, b + 1))
        a("v_cvt_pk_bf16_f32 v%d, v%d, v%d" % (b + 1, b + 2, b + 3))
        a("buffer_store_dwordx2 %s, v4, s[%d:%d], s%d offen" % (vr(b, 2), SOUT, SOUT + 3, sOut))
        a("s_add_u32 s%d, s%d, 16384" % (sOut, sOut))
    if opts.get('stamps'):
        a("s_waitcnt vmcnt(0)")
        stamp(a, 2, opts)
        stamp_flush(a, 3, opts, sW, SWS, 2, base_idx=8, nstamp=12)
    a.lab("L_k2_end")
    a("s_endpgm")
    return a

def build(opts, verbose=False):
    k1 = gen_k1(opts); k2 = gen_k2(opts)
    txt = header(["kernel=attn_kernel grid=(256,1,1) block=(256,1,1) lds=163840",
                  "kernel=oproj_kernel grid=(256,1,1) block=(256,1,1) lds=163840"], opts.get('comment', ""))
    for nm, k in (("k1", k1), ("k2", k2)):
        lines, n = hazard.fix(k.lines, verbose, nm)
        errs = hazard.check_counters(lines, nm)
        for e in errs[:20]: print("ERR", e)
        if verbose: print(nm, "nops inserted:", n, "lines:", len(lines))
        txt += "\n".join(lines) + "\n"
    e = hazard.lint_srd(txt)
    assert not e, e
    txt += descriptor("attn_kernel", 512, 100, 256)
    txt += descriptor("oproj_kernel", 256, 96, 256)
    return txt

if __name__ == "__main__":
    v = "-v" in sys.argv
    open("m2.s", "w").write(build(dict(), v))
    open("m2_st.s", "w").write(build(dict(stamps=True)))
    allnt = dict(wq_flags=" nt", x_flags=" nt", wo_flags=" nt", ol_flags=" nt")
    open("m2_ant.s", "w").write(build(allnt))
    open("m2_nont.s", "w").write(build(dict(nt=False)))
    open("m2_wnt.s", "w").write(build(dict(wq_flags=" nt", wo_flags=" nt")))
    open("m2_ost.s", "w").write(build(dict(o_flags=" sc0 sc1")))
    open("m2_ostnt.s", "w").write(build(dict(o_flags=" nt")))
```

```python
import sys, math, struct
from asmlib import *
import hazard

C_SCALE = math.log2(math.e) / math.sqrt(128.0)
def fbits(x): return struct.unpack("<I", struct.pack("<f", x))[0]
PBASE = 0x0
FLAGB = 0x2000000
STAMPB = 0x1F000000
NSTAMP = 12

class G(Asm):
    def __init__(self):
        super().__init__()
        self.vm = []; self.lg = []
    def vmem(self, s, tag):
        self(s); self.vm.append(tag)
    def vcount(self, tag):
        idx = max(i for i, t in enumerate(self.vm) if t == tag)
        n = len(self.vm) - 1 - idx
        self.vm = self.vm[idx + 1:]
        assert n <= 63
        return n
    def vwait(self, tag):
        if tag not in self.vm: return
        self("s_waitcnt vmcnt(%d)" % self.vcount(tag))
    def lds(self, s, tag):
        self(s); self.lg.append(tag)
        assert len(self.lg) <= 15, ("lds overflow", s)
    def lwait(self, tag):
        if tag not in self.lg: return
        idx = max(i for i, t in enumerate(self.lg) if t == tag)
        n = len(self.lg) - 1 - idx
        self.lg = self.lg[idx + 1:]
        self("s_waitcnt lgkmcnt(%d)" % n)
    def lwait_all(self):
        if self.lg:
            self("s_waitcnt lgkmcnt(0)"); self.lg = []

def run_gaps(n, mf, pre, fill):
    for g in range(n):
        for f in pre.get(g, []): f()
        mf[g]()
        for f in fill.get(g, []): f()
def spread(fill, items, g0, g1):
    n = len(items); m = g1 - g0
    for k, it in enumerate(items):
        g = g0 + (k * m) // n
        fill.setdefault(g, []).append(it)

def gen(opts):
    a = G()
    ST = opts.get('stamps')
    def stamp(idx):
        if not ST: return
        a("s_memrealtime s[%d:%d]" % (76 + 2 * idx, 77 + 2 * idx))
        a("s_waitcnt lgkmcnt(0)")
        a.lg = []
    NT = " nt" if opts.get('nt', True) else ""
    WNT = opts.get('wq_flags', ""); XNT = opts.get('x_flags', ""); WOF = opts.get('wo_flags', "")
    PST = opts.get('p_st', " sc1"); PLD = opts.get('p_ld', " sc1")
    ROT = opts.get('rot', True)
    T_LOG2 = opts.get('T', 8.0)
    vKd = [10, 11, 12, 13]; vVd = [14, 15]; vWd = 16; vXd = [17, 9]; aX = [7, 8]
    aK = [18, 19, 20, 21]; aV = list(range(22, 30)); aW = [30, 31, 32, 33]
    vMC = [34, 35, 36]; vT = list(range(37, 46))
    vWo = [30, 31]; vL16 = 32
    Sb = lambda buf, kt, qt: 52 + 24 * buf + (kt * 3 + qt) * 4
    P = lambda qt: 100 + 4 * qt
    O = lambda dt, qt: 152 + (dt * 3 + qt) * 4
    Xf = lambda ks, qt: 52 + (ks * 3 + qt) * 4
    Qa = lambda s, qt: (s * 3 + qt) * 4
    La = lambda qt: 48 + 4 * qt
    ONES = 60
    Kf = lambda s, kt: 64 + (s * 2 + kt) * 4
    Vf = lambda dt: 96 + 4 * dt
    Wf = lambda buf, dt: 128 + buf * 32 + dt * 4
    vr = lambda b, n=4: "v[%d:%d]" % (b, b + n - 1)
    ar = lambda b, n=4: "a[%d:%d]" % (b, b + n - 1)
    sW = 40; sH0 = 41; sB = 42; sQH = 43; sKV = 44; sCur = 45; sPrev = 46; sDK = 47; sWoff = 48; sT = 49
    sXo = 50; sP = 51; sC0 = 52; sWq = 53; sC = 54; sTmp = 55; sTmp2 = 56; sDV = 57
    sHP = 58; sW8k = 59; sW3k = 60; sCh = 61; sChX = 62; sWoB = 63; sR0 = 64; sPart = 65; sN = 66
    sNxt = 68; sCB = 69; sM0 = 70
    SX, SK, SV, SWQ, SWS, SWO, SOUT, SDBG = 20, 24, 28, 32, 36, 4, 8, 12

    a(kernel_begin(KNAME))
    a("s_cmp_ge_u32 s2, 256")
    a("s_cbranch_scc1 L_end")
    stamp(0)
    a("s_load_dwordx16 s[52:67], s[0:1], 0")
    a("v_lshrrev_b32 v2, 6, v0")
    a("v_and_b32 v1, 63, v0")
    a("v_readfirstlane_b32 s%d, v2" % sW)
    a("v_lshrrev_b32 v2, 4, v1")
    a("v_and_b32 v3, 15, v1")
    a("v_lshlrev_b32 v4, 2, v2")
    a("v_xor_b32 v4, v3, v4")
    a("v_lshlrev_b32 v4, 4, v4")
    a("v_lshl_add_u32 v%d, v2, 13, v4" % vWd)
    a("v_and_b32 v5, 7, v1")
    a("v_lshrrev_b32 v6, 3, v1")
    for jp in range(2):
        a("s_add_u32 s3, s%d, %d" % (sW, jp))
        a("s_and_b32 s3, s3, 1")
        a("s_lshl_b32 s3, s3, 2")
        a("v_add_u32 v4, s3, v2")
        a("v_xor_b32 v4, v5, v4")
        a("v_lshlrev_b32 v4, 4, v4")
        a("v_lshl_add_u32 v%d, v6, 10, v4" % vXd[jp])
    a("s_and_b32 s16, s2, 7")
    a("s_lshr_b32 s17, s2, 3")
    a("s_and_b32 s18, s16, 3")
    a("s_lshl_b32 s18, s18, 2")
    a("s_and_b32 s3, s17, 3")
    a("s_add_u32 s18, s18, s3")
    a("s_lshl_b32 s%d, s18, 1" % sH0)
    a("s_lshr_b32 s%d, s16, 2" % sB)
    a("s_lshl_b32 s%d, s%d, 3" % (sB, sB))
    a("s_lshr_b32 s17, s17, 2")
    a("s_add_u32 s%d, s%d, s17" % (sB, sB))
    if ROT:
        a("s_lshl_b32 s3, s3, 1")
        a("s_add_u32 s3, s3, s17")
        a("s_and_b32 s19, s3, 7")
        a("s_and_b32 s17, s17, 3")
    else:
        a("s_mov_b32 s19, 0")
        a("s_mov_b32 s17, 0")
    a("s_lshr_b32 s%d, s%d, 1" % (sP, sW))
    a("s_and_b32 s%d, s%d, 1" % (sQH, sW))
    a("s_mul_i32 s%d, s%d, 96" % (sXo, sB))
    a("s_mul_i32 s3, s%d, 24" % sW)
    a("s_add_u32 s%d, s%d, s3" % (sXo, sXo))
    a("s_lshl_b32 s%d, s%d, 10" % (sXo, sXo))
    a("s_waitcnt lgkmcnt(0)")
    srd(a, SWQ, 58, 0x400000)
    srd(a, SX, 52, 16 * 96 * 512 * 2)
    srd(a, SK, 54, 0x8000000)
    srd(a, SV, 56, 0x8000000)
    srd(a, SWO, 60, 0x400000)
    srd(a, SOUT, 62, 16 * 96 * 512 * 2)
    srd(a, SDBG, 64, 256)
    srd(a, SWS, 66, 0x20000000)
    a("s_mov_b32 s%d, s18" % sHP)
    a("s_mov_b32 s%d, s19" % sC0)
    a("s_mov_b32 s%d, s17" % sR0)
    a("s_lshl_b32 s%d, s%d, 18" % (sWq, sQH))
    a("s_add_u32 s3, s%d, s%d" % (sH0, sP))
    a("s_lshl_b32 s3, s3, 8")
    a("s_add_u32 s%d, s%d, s3" % (sWq, sWq))
    a("s_lshl_b32 s%d, s%d, 13" % (sW8k, sW))
    a("s_mul_i32 s%d, s%d, 3072" % (sW3k, sW))

    CB = [65536, 114688]
    def cbase(i): return CB[i & 1]
    def C_items(i):
        items = []
        def head():
            a("s_add_u32 s%d, s%d, %d" % (sCh, sC0, i))
            a("s_and_b32 s%d, s%d, 7" % (sCh, sCh))
            a("s_lshl_b32 s%d, s%d, 7" % (sChX, sCh))
            a("s_add_u32 s%d, s%d, s%d" % (sChX, sChX, sXo))
            a("s_lshl_b32 s%d, s%d, 19" % (sCh, sCh))
            a("s_add_u32 s%d, s%d, s%d" % (sCh, sCh, sWq))
        def wq(jj):
            if jj == 0: head()
            a("s_add_u32 m0, s%d, %d" % (sW8k, cbase(i) + jj * 1024))
            a("s_add_u32 s%d, s%d, %d" % (sTmp, sCh, 4 * jj * 8192))
            a.vmem("buffer_load_dwordx4 v%d, s[%d:%d], s%d offen%s lds" % (vWd, SWQ, SWQ + 3, sTmp, WNT), "C%d" % i)
        def xx(j):
            a("s_add_u32 m0, s%d, %d" % (sW3k, cbase(i) + 32768 + j * 1024))
            a("s_add_u32 s%d, s%d, %d" % (sTmp, sChX, 8 * j * 1024))
            a.vmem("buffer_load_dwordx4 v%d, s[%d:%d], s%d offen%s lds" % (vXd[j & 1], SX, SX + 3, sTmp, XNT), "C%d" % i)
        for jj in range(8): items.append(lambda jj=jj: wq(jj))
        for j in range(3): items.append(lambda j=j: xx(j))
        return items
    for it in C_items(0) + C_items(1): it()

    for jj in range(4):
        a("v_add_u32 v4, %d, v2" % (4 * jj))
        a("v_xor_b32 v4, v3, v4")
        a("v_lshlrev_b32 v4, 4, v4")
        a("v_lshl_add_u32 v%d, v2, 8, v4" % vKd[jj])
    for jp in range(2):
        a("v_add_u32 v4, %d, v2" % (4 * jp))
        a("v_lshlrev_b32 v4, 1, v4")
        a("v_xor_b32 v4, v3, v4")
        a("v_lshlrev_b32 v4, 4, v4")
        a("v_lshl_add_u32 v%d, v2, 8, v4" % vVd[jp])
    a("s_lshl_b32 s%d, s%d, 14" % (sWoff, sP))
    a("s_lshl_b32 s3, s%d, 12" % sQH)
    a("s_add_u32 s%d, s%d, s3" % (sWoff, sWoff))
    a("s_lshl_b32 s%d, s%d, 5" % (sKV, sB))
    a("s_add_u32 s%d, s%d, s%d" % (sKV, sKV, sH0))
    a("s_add_u32 s%d, s%d, s%d" % (sKV, sKV, sP))
    a("s_lshl_b32 s%d, s%d, 18" % (sKV, sKV))
    a("s_add_u32 s%d, s%d, s3" % (sKV, sKV))

    def KV_items(tag, slot_sgpr=None, slot_const=None):
        items = []
        def one(n):
            isv = n >= 4; jj = n & 3
            if jj == 0:
                if slot_sgpr is not None:
                    a("s_add_u32 s%d, s%d, s%d" % (sM0, slot_sgpr, sWoff))
                    a("s_add_u32 m0, s%d, %d" % (sM0, 8192 if isv else 0))
                else:
                    a("s_add_u32 m0, s%d, %d" % (sWoff, slot_const + (8192 if isv else 0)))
                a("s_nop 0")
            return isv, jj
        def mk(n):
            def f():
                isv = n >= 4; jj = n & 3
                if slot_sgpr is not None:
                    if n == 0: a("s_add_u32 s%d, s%d, s%d" % (sM0, slot_sgpr, sWoff))
                    a("s_add_u32 m0, s%d, %d" % (sM0, 8192 if isv else 0)) if (jj == 0 or opts.get('_mixed')) else None
                else:
                    a("s_add_u32 m0, s%d, %d" % (sWoff, slot_const + (8192 if isv else 0))) if (jj == 0 or opts.get('_mixed')) else None
                if jj == 0 or opts.get('_mixed'): a("s_nop 0")
                if isv:
                    a.vmem("buffer_load_dwordx4 v%d, s[%d:%d], s%d offen offset:%d%s lds" % (vVd[jj & 1], SV, SV + 3, sKV, jj * 1024, NT), tag)
                else:
                    a.vmem("buffer_load_dwordx4 v%d, s[%d:%d], s%d offen offset:%d%s lds" % (vKd[jj], SK, SK + 3, sKV, jj * 1024, NT), tag)
                if n == 7:
                    a("s_add_u32 s%d, s%d, %d" % (sKV, sKV, 0 if opts.get('kvsame') else 8192))
            return f
        return [mk(n) for n in range(8)]

    a("v_lshrrev_b32 v5, 2, v3")
    a("v_and_b32 v6, 3, v1")
    a("s_lshl_b32 s3, s%d, 14" % sP)
    for s in range(4):
        a("v_add_u32 v4, %d, v2" % (4 * s))
        a("v_xor_b32 v4, v4, v3")
        a("v_lshlrev_b32 v4, 4, v4")
        a("v_lshl_add_u32 v4, v3, 8, v4")
        a("v_add_u32 v%d, s3, v4" % aK[s])
    a("v_lshl_add_u32 v4, v2, 2, v5")
    a("v_and_b32 v0, 7, v4")
    a("v_lshlrev_b32 v0, 5, v0")
    a("v_lshl_add_u32 v0, v4, 8, v0")
    a("v_lshl_add_u32 v0, v6, 3, v0")
    a("s_add_u32 s%d, s3, 8192" % sTmp)
    a("v_add_u32 v%d, s%d, v0" % (aV[0], sTmp))
    for dt in range(1, 8):
        a("v_xor_b32 v%d, %d, v%d" % (aV[dt], dt << 5, aV[0]))
    a("v_lshl_add_u32 v4, v2, 3, v5")
    a("v_lshlrev_b32 v4, 8, v4")
    a("v_lshl_add_u32 v4, v6, 4, v4")
    a("v_add_u32 v4, s3, v4")
    for sp in range(4):
        a("v_xor_b32 v7, %d, v5" % sp)
        a("v_lshl_add_u32 v%d, v7, 6, v4" % aW[sp])
    a("v_lshrrev_b32 v4, 1, v3")
    a("s_mul_i32 s3, s%d, 6144" % sQH)
    a("s_add_u32 s3, s3, 32768")
    for ks in range(2):
        a("v_add_u32 v5, %d, v2" % (4 * ks))
        a("v_xor_b32 v5, v5, v4")
        a("v_lshlrev_b32 v5, 4, v5")
        a("v_lshl_add_u32 v5, v3, 7, v5")
        a("v_add_u32 v%d, s3, v5" % aX[ks])
    a("s_mov_b32 s%d, 0x%x" % (sC, fbits(C_SCALE)))
    a("v_mov_b32 v4, 0x3f803f80")
    for i in range(4):
        a("v_accvgpr_write_b32 a%d, v4" % (ONES + i))
    for i in range(12):
        a("v_accvgpr_write_b32 a%d, 0" % (48 + i))
    a("s_or_b32 s3, s2, s%d" % sW)
    a("s_cmp_eq_u32 s3, 0")
    a("s_cbranch_scc0 L_nononce")
    a("s_memrealtime s[%d:%d]" % (sN, sN + 1))
    a("s_waitcnt lgkmcnt(0)")
    a("s_or_b32 s%d, s%d, 1" % (sN, sN))
    a("v_mov_b32 v4, s%d" % sN)
    a("v_mov_b32 v5, s%d" % (sN + 1))
    a("v_mov_b32 v6, 0")
    a("buffer_store_dwordx2 v[4:5], v6, s[%d:%d], 0 offen sc1" % (SDBG, SDBG + 3))
    a.lab("L_nononce")

    tW = [vT[0], vT[1], vT[2], vT[3]]; tX = [vT[4], vT[5]]
    KVQ = opts.get('kvq', [0, 1, 2, 3, 4, 5, 6, 7])
    nonlocal_kvq = [KVQ]
    opts['_mixed'] = True
    kv01 = KV_items("KV0", slot_const=0) + KV_items("KV1", slot_const=32768)
    def q_iter(i):
        a.vwait("C%d" % i)
        if i in (0, 2, 7) and not opts.get('qtwice'): stamp({0: 1, 2: 2, 7: 3}[i])
        a("s_barrier")
        for sp in range(4):
            a("v_add_u32 v%d, %d, v%d" % (tW[sp], cbase(i), aW[sp]))
        for ks in range(2):
            a("v_add_u32 v%d, %d, v%d" % (tX[ks], cbase(i), aX[ks]))
        def xr(ks, qt): a.lds("ds_read_b128 %s, v%d offset:%d" % (vr(Xf(ks, qt)), tX[ks], qt * 2048), "x%d" % ks)
        def wr(tl, dt, u):
            sp, ab = dt >> 1, dt & 1
            a.lds("ds_read_b64_tr_b16 %s, v%d offset:%d" % (ar(Wf(tl, dt) + 2 * u, 2), tW[sp], tl * 8192 + u * 1024 + ab * 8), "w%d_%d" % (tl, dt))
        W = lambda tl, dts: [(lambda tl=tl, dt=dt, u=u: wr(tl, dt, u)) for dt in dts for u in range(2)]
        for qt in range(3): xr(0, qt)
        for f in W(0, range(0, 4)): f()
        dma = []; dma2 = []
        if 1 <= i <= 6: dma += C_items(i + 1)
        dma2 += [kv01[2 * q + e] for q in range(8) if nonlocal_kvq[0][q] == i for e in range(2)]
        if i == 7:
            dma = dma2 + KV_items("KV2", slot_const=65536); dma2 = []
        mf = []; pre = {}; fill = {}
        for tl in range(2):
            for dt in range(8):
                for qt in range(3):
                    c = "0" if (i == 0 and tl == 0) else vr(O(dt, qt))
                    mf.append(lambda tl=tl, dt=dt, qt=qt, c=c: a("v_mfma_f32_16x16x32_bf16 %s, %s, %s, %s" % (vr(O(dt, qt)), ar(Wf(tl, dt)), vr(Xf(tl, qt)), c)))
        for tl in range(2):
            for dt in (1, 3, 5, 7):
                g = tl * 24 + (dt - 1) * 3
                pre.setdefault(g, []).append(lambda tl=tl, dt=dt: a.lwait("w%d_%d" % (tl, dt)))
        spread(fill, W(0, range(4, 8)), 0, 6)
        spread(fill, [lambda qt=qt: xr(1, qt) for qt in range(3)] + W(1, range(0, 4)), 12, 20)
        spread(fill, W(1, range(4, 8)), 24, 30)
        g0, g1, g2 = opts.get('qspread', (0, 22, 40))
        if dma: spread(fill, dma, g0, g1)
        if dma2: spread(fill, dma2, g1, g2)
        run_gaps(48, mf, pre, fill)
        a.lwait_all()
    if opts.get('qtwice'):
        saveK = KVQ
        nonlocal_kvq[0] = [99] * 8
        def q_iter_nokv2(i):
            q_iter(i)
        k2 = KV_items
        for i in range(8):
            q_iter(i) if i < 7 else None
        a.vwait("C7"); a("s_barrier")
        stamp(1)
        for it in C_items(0) + C_items(1): it()
        for i in range(7): q_iter(i)
        stamp(2)
        nonlocal_kvq[0] = [7] * 8
        q_iter(7)
        stamp(3)
    else:
        for i in range(8): q_iter(i)
    a("s_barrier")
    for it in KV_items("KV3", slot_const=98304): it()
    opts['_mixed'] = False
    for sp in range(4):
        for qt in range(3):
            for ab in range(2):
                o = O(2 * sp + ab, qt)
                a("v_cvt_pk_bf16_f32 v%d, v%d, v%d" % (vT[0 + 2 * ab], o, o + 1))
                a("v_cvt_pk_bf16_f32 v%d, v%d, v%d" % (vT[1 + 2 * ab], o + 2, o + 3))
            for i in range(4):
                a("v_accvgpr_write_b32 a%d, v%d" % (Qa(sp, qt) + i, vT[i]))
    for jp in range(2):
        a("v_add_u32 v4, %d, v2" % (4 * jp))
        a("v_lshlrev_b32 v4, 1, v4")
        a("v_xor_b32 v4, v3, v4")
        a("v_lshlrev_b32 v4, 4, v4")
        a("v_lshl_add_u32 v%d, v2, 10, v4" % vWo[jp])
    a("v_lshlrev_b32 v%d, 4, v1" % vL16)
    a("s_lshl_b32 s%d, s%d, 17" % (sWoB, sH0))
    a("s_lshl_b32 s3, s%d, 15" % sW)
    a("s_add_u32 s%d, s%d, s3" % (sWoB, sWoB))
    stamp(4)

    def k_read(s, kt): a.lds("ds_read_b128 %s, v%d offset:%d" % (ar(Kf(s, kt)), aK[s], kt * 4096), "k%d" % s)
    def v_read(dt, u): a.lds("ds_read_b64_tr_b16 %s, v%d offset:%d" % (ar(Vf(dt) + 2 * u, 2), aV[dt], u * 4096), "v%d" % dt)
    def qk_mfma(buf, m):
        s, kt, qt = m // 6, (m % 6) // 3, m % 3
        c = "0" if s == 0 else vr(Sb(buf, kt, qt))
        a("v_mfma_f32_16x16x32_bf16 %s, %s, %s, %s" % (vr(Sb(buf, kt, qt)), ar(Kf(s, kt)), ar(Qa(s, qt)), c))

    kv0_tag = "KV0"
    a.vwait(kv0_tag)
    a("s_barrier")
    for s in range(4):
        for kt in range(2): k_read(s, kt)
    for i in range(96):
        a("v_mov_b32 v%d, 0" % (152 + i))
    for m in range(24):
        if m % 6 == 0: a.lwait("k%d" % (m // 6))
        qk_mfma(0, m)
    for s in range(4):
        a("v_add_u32 v%d, 32768, v%d" % (aK[s], aK[s]))
    for qt in range(3):
        s0, s1 = Sb(0, 0, qt), Sb(0, 1, qt)
        mx, t = vT[0], vT[1]
        a("v_max3_f32 v%d, v%d, v%d, v%d" % (mx, s0, s0 + 1, s0 + 2))
        a("v_max3_f32 v%d, v%d, v%d, v%d" % (t, s0 + 3, s1, s1 + 1))
        a("v_max3_f32 v%d, v%d, v%d, v%d" % (mx, mx, s1 + 2, s1 + 3))
        a("v_max_f32 v%d, v%d, v%d" % (mx, mx, t))
        a("v_mov_b32 v%d, v%d" % (t, mx))
        a("v_permlane16_swap_b32 v%d, v%d" % (t, mx))
        a("v_max_f32 v%d, v%d, v%d" % (mx, mx, t))
        a("v_mov_b32 v%d, v%d" % (t, mx))
        a("v_permlane32_swap_b32 v%d, v%d" % (t, mx))
        a("v_max_f32 v%d, v%d, v%d" % (mx, mx, t))
        a("v_mul_f32 v%d, s%d, v%d" % (vMC[qt], sC, mx))
    a("s_mov_b32 s%d, 0" % sCur)
    a("s_mov_b32 s%d, 32768" % sNxt)
    a("s_mov_b32 s%d, 131072" % sPrev)
    a("s_mov_b32 s%d, 0" % sT)
    assert a.vm[-16:] == ["KV2"] * 8 + ["KV3"] * 8, a.vm

    rare_blocks = []
    def step(vmn, dma_items, uid, buf, qk=True):
        a("s_waitcnt vmcnt(%d)" % vmn)
        a("s_barrier")
        if qk:
            for s in range(4):
                for kt in range(2): k_read(s, kt)
        V = lambda dts: [(lambda dt=dt, u=u: v_read(dt, u)) for dt in dts for u in range(2)]
        for f in V(range(0, 3)): f()
        def fma(qt, j):
            r = Sb(buf, j >> 2, qt) + (j & 3)
            a("v_fma_f32 v%d, v%d, s%d, -v%d" % (r, r, sC, vMC[qt]))
        def ex(qt, j):
            r = Sb(buf, j >> 2, qt) + (j & 3)
            a("v_exp_f32 v%d, v%d" % (r, r))
        def cv(qt, j):
            kt, h = j >> 1, j & 1
            s0 = Sb(buf, kt, qt) + 2 * h
            a("v_cvt_pk_bf16_f32 v%d, v%d, v%d" % (P(qt) + 2 * kt + h, s0, s0 + 1))
        FM = lambda qt: [(lambda j=j: fma(qt, j)) for j in range(8)]
        EX = lambda qt: [(lambda j=j: ex(qt, j)) for j in range(8)]
        CV = lambda qt: [(lambda j=j: cv(qt, j)) for j in range(4)]
        allr = [Sb(buf, j >> 2, qt) + (j & 3) for qt in range(3) for j in range(8)]
        MX = []
        t = vT[0:4]
        for k in range(4):
            r = allr[6 * k:6 * k + 6]
            MX.append(lambda k=k, r=r: a("v_max3_f32 v%d, v%d, v%d, v%d" % (t[k], r[0], r[1], r[2])))
            MX.append(lambda k=k, r=r: a("v_max3_f32 v%d, v%d, v%d, v%d" % (t[k], t[k], r[3], r[4])))
        r5 = [allr[6 * k + 5] for k in range(4)]
        MX.append(lambda: a("v_max3_f32 v%d, v%d, v%d, v%d" % (t[0], t[0], t[1], r5[0])))
        MX.append(lambda: a("v_max3_f32 v%d, v%d, v%d, v%d" % (t[2], t[2], t[3], r5[1])))
        MX.append(lambda: a("v_max3_f32 v%d, v%d, v%d, v%d" % (t[0], t[0], r5[2], r5[3])))
        MX.append(lambda: a("v_max_f32 v%d, v%d, v%d" % (t[0], t[0], t[2])))
        def chk():
            a("v_cmp_lt_f32 vcc, 0x%x, v%d" % (fbits(T_LOG2), t[0]))
            a("s_cbranch_vccnz L_rare_%s" % uid)
            a.lab("L_cont_%s" % uid)
        rare_blocks.append((uid, buf))
        def pv(g):
            qt, k = g // 9, g % 9
            if k == 0:
                a("v_mfma_f32_16x16x32_bf16 %s, %s, %s, %s" % (ar(La(qt)), ar(ONES), vr(P(qt)), ar(La(qt))))
            else:
                dt = k - 1
                a("v_mfma_f32_16x16x32_bf16 %s, %s, %s, %s" % (vr(O(dt, qt)), ar(Vf(dt)), vr(P(qt)), vr(O(dt, qt))))
        def slots():
            a("s_mov_b32 s%d, s%d" % (sPrev, sCur))
            a("s_mov_b32 s%d, s%d" % (sCur, sNxt))
            a("s_add_u32 s%d, s%d, 32768" % (sNxt, sNxt))
            a("s_cmp_eq_u32 s%d, 163840" % sNxt)
            a("s_cselect_b32 s%d, 0, s%d" % (sNxt, sNxt))
            a("s_sub_u32 s%d, s%d, s%d" % (sDK, sNxt, sCur))
            a("s_sub_u32 s%d, s%d, s%d" % (sDV, sCur, sPrev))
        ADDR = [(lambda r=r: a("v_add_u32 v%d, s%d, v%d" % (r, sDK, r))) for r in aK] + \
               [(lambda r=r: a("v_add_u32 v%d, s%d, v%d" % (r, sDV, r))) for r in aV]
        if qk:
            for f in FM(0): f()
            mf = [(lambda m=m: qk_mfma(buf ^ 1, m)) for m in range(24)] + [(lambda g=g: pv(g)) for g in range(27)]
            pre = {0: [lambda: a.lwait("k0")], 6: [lambda: a.lwait("k1")], 12: [lambda: a.lwait("k2")], 18: [lambda: a.lwait("k3")],
                   25: [lambda: a.lwait("v3")], 29: [lambda: a.lwait("v7")]}
            fill = {}
            spread(fill, FM(1) + FM(2), 0, 6)
            spread(fill, MX, 6, 10)
            spread(fill, V(range(3, 5)), 6, 10)
            fill.setdefault(9, []).append(chk)
            spread(fill, EX(0) + CV(0) + EX(1), 10, 18)
            spread(fill, V(range(5, 6)), 12, 14)
            spread(fill, V(range(6, 7)), 18, 20)
            spread(fill, CV(1) + EX(2), 18, 24)
            fill.setdefault(21, []).append(lambda: a.lwait("v0"))
            spread(fill, V(range(7, 8)), 21, 23)
            spread(fill, CV(2), 24, 27)
            spread(fill, dma_items, 26, 42)
            fill.setdefault(41, []).append(slots)
            spread(fill, ADDR, 42, 51)
            run_gaps(51, mf, pre, fill)
        else:
            for f in V(range(3, 7)): f()
            for f in FM(0) + FM(1) + FM(2) + MX: f()
            chk()
            a.lwait("v3")
            for f in V(range(7, 8)): f()
            for f in EX(0) + CV(0): f()
            mf = [(lambda g=g: pv(g)) for g in range(27)]
            pre = {1: [lambda: a.lwait("v3")], 5: [lambda: a.lwait("v7")]}
            fill = {}
            spread(fill, EX(1) + CV(1), 0, 8)
            spread(fill, EX(2) + CV(2), 9, 17)
            spread(fill, dma_items, 18, 26)
            run_gaps(27, mf, pre, fill)
        assert not a.lg, a.lg

    def rare(uid, buf):
        a.lab("L_rare_%s" % uid)
        for qt in range(3):
            s0, s1 = Sb(buf, 0, qt), Sb(buf, 1, qt)
            mx, t = vT[4], vT[5]
            a("v_max3_f32 v%d, v%d, v%d, v%d" % (mx, s0, s0 + 1, s0 + 2))
            a("v_max3_f32 v%d, v%d, v%d, v%d" % (t, s0 + 3, s1, s1 + 1))
            a("v_max3_f32 v%d, v%d, v%d, v%d" % (mx, mx, s1 + 2, s1 + 3))
            a("v_max3_f32 v%d, v%d, v%d, 0" % (mx, mx, t))
            a("v_mov_b32 v%d, v%d" % (t, mx))
            a("v_permlane16_swap_b32 v%d, v%d" % (t, mx))
            a("v_max_f32 v%d, v%d, v%d" % (mx, mx, t))
            a("v_mov_b32 v%d, v%d" % (t, mx))
            a("v_permlane32_swap_b32 v%d, v%d" % (t, mx))
            a("v_max_f32 v%d, v%d, v%d" % (mx, mx, t))
            a("v_add_f32 v%d, v%d, v%d" % (vMC[qt], vMC[qt], mx))
            for j in range(4):
                a("v_sub_f32 v%d, v%d, v%d" % (s0 + j, s0 + j, mx))
                a("v_sub_f32 v%d, v%d, v%d" % (s1 + j, s1 + j, mx))
            a("v_sub_f32 v%d, 0, v%d" % (t, mx))
            a("v_exp_f32 v%d, v%d" % (t, t))
            a("s_nop 0")
            for dt in range(8):
                for j in range(4):
                    a("v_mul_f32 v%d, v%d, v%d" % (O(dt, qt) + j, t, O(dt, qt) + j))
            for j in range(4):
                a("v_accvgpr_read_b32 v%d, a%d" % (mx, La(qt) + j))
                a("v_mul_f32 v%d, v%d, v%d" % (mx, t, mx))
                a("v_accvgpr_write_b32 a%d, v%d" % (La(qt) + j, mx))
        a("s_branch L_cont_%s" % uid)

    saved_vm = list(a.vm)
    a.lab("L_loop")
    step(16, KV_items("KVx", slot_sgpr=sPrev), "m0", 0)
    step(16, KV_items("KVx", slot_sgpr=sPrev), "m1", 1)
    a("s_add_u32 s%d, s%d, 2" % (sT, sT))
    a("s_cmp_lt_u32 s%d, 28" % sT)
    a("s_cbranch_scc1 L_loop")
    a.vm = ["KV29"] * 8 + ["KV30"] * 8 + ["KV31"] * 8

    HSLOT = [65536, 98304, 131072, 0, 32768, 65536, 98304, 131072]
    def H_items(H):
        r, half = H >> 1, H & 1
        def one(jj):
            if jj == 0:
                a("s_add_u32 s%d, s%d, %d" % (sCB, sR0, r))
                a("s_and_b32 s%d, s%d, 3" % (sCB, sCB))
                a("s_lshl_b32 s%d, s%d, 8" % (sCB, sCB))
                a("s_add_u32 s%d, s%d, s%d" % (sCB, sCB, sWoB))
            a("s_add_u32 m0, s%d, %d" % (sW8k, HSLOT[H] + jj * 1024))
            a("s_add_u32 s%d, s%d, %d" % (sTmp, sCB, (128 * half + 4 * jj) * 1024))
            a.vmem("buffer_load_dwordx4 v%d, s[%d:%d], s%d offen%s lds" % (vWo[jj & 1], SWO, SWO + 3, sTmp, WOF), "H%d" % H)
        return [(lambda jj=jj: one(jj)) for jj in range(8)]
    def nonce_load():
        a("v_mov_b32 v4, 0")
        a.vmem("buffer_load_dwordx2 v[2:3], v4, s[%d:%d], 0 offen sc1" % (SDBG, SDBG + 3), "N")
    step(a.vcount("KV29"), H_items(0), "t0", 0)
    step(a.vcount("KV30"), H_items(1), "t1", 1)
    step(a.vcount("KV31"), H_items(2), "t2", 0)
    step(len(a.vm), [nonce_load], "t3", 1, qk=False)
    stamp(5)

    F = lambda s, qt: 52 + (s * 3 + qt) * 4
    for qt in range(3):
        a("v_accvgpr_read_b32 v%d, a%d" % (vT[6 + qt], La(qt)))
    for qt in range(3):
        a("v_rcp_f32 v%d, v%d" % (vT[6 + qt], vT[6 + qt]))
    a("s_barrier")
    a("s_mul_i32 s3, s%d, 12288" % sW)
    a("v_add_u32 v4, s3, v%d" % vL16)
    for qt in range(3):
        for s in range(4):
            d = F(s, qt)
            for ab in range(2):
                o = O(2 * s + ab, qt)
                for j in range(4):
                    a("v_mul_f32 v%d, v%d, v%d" % (o + j, vT[6 + qt], o + j))
                a("v_cvt_pk_bf16_f32 v%d, v%d, v%d" % (d + 2 * ab, o, o + 1))
                a("v_cvt_pk_bf16_f32 v%d, v%d, v%d" % (d + 2 * ab + 1, o + 2, o + 3))
            a.lds("ds_write_b128 v4, %s offset:%d" % (vr(d), (s * 3 + qt) * 1024), "ex")
    a.lwait_all()
    a("s_barrier")
    Bo = lambda ks, qt: 152 + (ks * 3 + qt) * 4
    a("s_mul_i32 s3, s%d, 12288" % sQH)
    a("v_add_u32 v4, s3, v%d" % vL16)
    n = 0
    for pp in range(2):
        for s in range(4):
            for qt in range(3):
                if n == 12: a.lwait_all()
                a.lds("ds_read_b128 %s, v4 offset:%d" % (vr(Bo(4 * pp + s, qt)), pp * 24576 + (s * 3 + qt) * 1024), "bo")
                n += 1
    aO = [[34 + 4 * bb + nt for nt in range(4)] for bb in range(3)]
    a("s_lshl_b32 s3, s%d, 7" % sP)
    a("v_xor_b32 v%d, s3, v0" % aO[0][0])
    for nt in range(1, 4):
        a("v_xor_b32 v%d, %d, v%d" % (aO[0][nt], nt << 5, aO[0][0]))
    for bb in (1, 2):
        for nt in range(4):
            a("v_add_u32 v%d, %d, v%d" % (aO[bb][nt], 65536 * bb, aO[0][nt]))
    a("s_lshl_b32 s%d, s%d, 4" % (sPart, sB))
    a("s_add_u32 s%d, s%d, s%d" % (sPart, sPart, sHP))
    a("s_mul_i32 s%d, s%d, 96" % (sPart, sPart))
    a("s_mul_i32 s3, s%d, 3" % sQH)
    a("s_add_u32 s%d, s%d, s3" % (sPart, sPart))
    a("s_mul_i32 s3, s%d, 12" % sP)
    a("s_add_u32 s%d, s%d, s3" % (sPart, sPart))
    a("s_lshl_b32 s%d, s%d, 10" % (sPart, sPart))
    if PBASE: a("s_add_u32 s%d, s%d, %d" % (sPart, sPart, PBASE))
    a.lwait_all()
    stamp(6)

    ACC = lambda ab_, nt, qt: 52 + 48 * ab_ + (nt * 3 + qt) * 4
    Af = lambda buf, nt: 64 + buf * 16 + nt * 4
    STG = [148, 46]
    def a_read(H, kl, buf, nt, u):
        base = HSLOT[H] + kl * 8192
        bb, off = base >> 16, base & 0xffff
        a.lds("ds_read_b64_tr_b16 %s, v%d offset:%d" % (ar(Af(buf, nt) + 2 * u, 2), aO[bb][nt], off + u * 4096), "a%d_%d" % (H, kl))
    def A_items(H, kl): return [(lambda nt=nt, u=u: a_read(H, kl, kl & 1, nt, u)) for nt in range(4) for u in range(2)]
    def store_items(r):
        items = []
        acc = r & 1
        def head():
            a("s_add_u32 s%d, s%d, %d" % (sTmp2, sR0, r))
            a("s_and_b32 s%d, s%d, 3" % (sTmp2, sTmp2))
            a("s_mul_i32 s%d, s%d, %d" % (sTmp2, sTmp2, 24 * 1024))
            a("s_add_u32 s%d, s%d, s%d" % (sTmp2, sTmp2, sPart))
        k = 0
        for i in range(2):
            for qt in range(3):
                d = STG[k & 1]
                def cvt(i=i, qt=qt, d=d, ab=0, first=(k == 0)):
                    if first: head()
                    for ab in range(2):
                        o = ACC(acc, 2 * i + ab, qt)
                        a("v_cvt_pk_bf16_f32 v%d, v%d, v%d" % (d + 2 * ab, o, o + 1))
                        a("v_cvt_pk_bf16_f32 v%d, v%d, v%d" % (d + 2 * ab + 1, o + 2, o + 3))
                def st(i=i, qt=qt, d=d):
                    a("s_add_u32 s3, s%d, %d" % (sTmp2, (6 * i + qt) * 1024))
                    a.vmem("buffer_store_dwordx4 %s, v%d, s[%d:%d], s3 offen%s" % (vr(d), vL16, SWS, SWS + 3, PST), "P%d" % r)
                items += [cvt, st]
                k += 1
        return items
    a.vwait("H0")
    a("s_barrier")
    for f in A_items(0, 0): f()
    for H in range(8):
        r, half = H >> 1, H & 1
        dma = []
        if H == 0: dma = H_items(3) + H_items(4)
        elif H in (1, 2, 3): dma = H_items(H + 4)
        stores = store_items(r - 1) if (half == 0 and r > 0) else []
        mf = []; pre = {}; fill = {}
        for kl in range(4):
            ks = 4 * half + kl
            for nt in range(4):
                for qt in range(3):
                    c = "0" if ks == 0 else vr(ACC(r & 1, nt, qt))
                    mf.append(lambda kl=kl, ks=ks, nt=nt, qt=qt, c=c: a("v_mfma_f32_16x16x32_bf16 %s, %s, %s, %s" % (vr(ACC(r & 1, nt, qt)), ar(Af(kl & 1, nt)), vr(Bo(ks, qt)), c)))
            pre[12 * kl] = [lambda H=H, kl=kl: a.lwait("a%d_%d" % (H, kl))]
            if kl < 3: spread(fill, A_items(H, kl + 1), 12 * kl + 1, 12 * kl + 9)
        if H < 7:
            def nextbar(H=H):
                a.vwait("H%d" % (H + 1))
                a("s_barrier")
            pre[36].append(nextbar)
            spread(fill, A_items(H + 1, 0), 37, 45)
        if dma: spread(fill, dma, 1, 34)
        if stores: spread(fill, stores, 6, 34)
        run_gaps(48, mf, pre, fill)
    for f in store_items(3): f()
    stamp(7)
    a("s_waitcnt vmcnt(0)")
    a.vm = []
    a("s_barrier")
    stamp(8)
    a("s_cmp_eq_u32 s%d, 0" % sW)
    a("s_cbranch_scc0 L_skip_sync")
    a("s_mov_b32 s%d, 0" % sT)
    a.lab("L_nonce_poll")
    a("s_add_u32 s%d, s%d, 1" % (sT, sT))
    a("s_cmp_gt_u32 s%d, 0x40000" % sT)
    a("s_cbranch_scc1 L_skip_sync")
    a("v_or_b32 v4, v2, v3")
    a("v_cmp_eq_u32 vcc, 0, v4")
    a("s_cbranch_vccz L_nonce_ok")
    a("s_sleep 2")
    a("v_mov_b32 v4, 0")
    a("buffer_load_dwordx2 v[2:3], v4, s[%d:%d], 0 offen sc1" % (SDBG, SDBG + 3))
    a("s_waitcnt vmcnt(0)")
    a("s_branch L_nonce_poll")
    a.lab("L_nonce_ok")
    a("s_lshl_b32 s%d, s%d, 7" % (sTmp, sB))
    a("s_add_u32 s%d, s%d, %d" % (sTmp, sTmp, FLAGB))
    a("s_lshl_b32 s3, s%d, 3" % sHP)
    a("v_mov_b32 v4, s3")
    a("buffer_store_dwordx2 v[2:3], v4, s[%d:%d], s%d offen sc1" % (SWS, SWS + 3, sTmp))
    a("v_and_b32 v5, 15, v1")
    a("v_lshlrev_b32 v5, 3, v5")
    a.lab("L_poll")
    a("s_add_u32 s%d, s%d, 1" % (sT, sT))
    a("s_cmp_gt_u32 s%d, 0x40000" % sT)
    a("s_cbranch_scc1 L_skip_sync")
    a("buffer_load_dwordx2 v[6:7], v5, s[%d:%d], s%d offen sc1" % (SWS, SWS + 3, sTmp))
    a("s_waitcnt vmcnt(0)")
    a("v_xor_b32 v6, v6, v2")
    a("v_xor_b32 v7, v7, v3")
    a("v_or_b32 v6, v6, v7")
    a("v_cmp_ne_u32 vcc, 0, v6")
    a("s_cbranch_vccz L_skip_sync")
    a("s_sleep 1")
    a("s_branch L_poll")
    a.lab("L_skip_sync")
    a("s_barrier")
    stamp(9)
    R = lambda i, f: 64 + (i * 6 + f) * 4
    a("s_lshl_b32 s%d, s%d, 4" % (sPart, sB))
    a("s_lshl_b32 s3, s%d, 2" % sW)
    a("s_add_u32 s%d, s%d, s3" % (sPart, sPart))
    a("s_mul_i32 s%d, s%d, 96" % (sPart, sPart))
    a("s_mul_i32 s3, s%d, 6" % sHP)
    a("s_add_u32 s%d, s%d, s3" % (sPart, sPart))
    a("s_lshl_b32 s%d, s%d, 10" % (sPart, sPart))
    if PBASE: a("s_add_u32 s%d, s%d, %d" % (sPart, sPart, PBASE))
    for f in range(6):
        for i in range(4):
            a("s_add_u32 s%d, s%d, %d" % (sTmp, sPart, (i * 96 + f) * 1024))
            a.vmem("buffer_load_dwordx4 %s, v%d, s[%d:%d], s%d offen%s" % (vr(R(i, f)), vL16, SWS, SWS + 3, sTmp, PLD), "R%d_%d" % (f, i))
    AC = lambda f: 160 + 8 * f
    a("s_mul_i32 s3, s%d, 12288" % sW)
    a("v_add_u32 v4, s3, v%d" % vL16)
    for f in range(6):
        for i in range(4):
            a.vwait("R%d_%d" % (f, i))
            for d in range(4):
                x = R(i, f) + d
                if i == 0:
                    a("v_lshlrev_b32 v%d, 16, v%d" % (AC(f) + 2 * d, x))
                    a("v_and_b32 v%d, 0xffff0000, v%d" % (AC(f) + 2 * d + 1, x))
                else:
                    a("v_lshlrev_b32 v%d, 16, v%d" % (vT[0], x))
                    a("v_and_b32 v%d, 0xffff0000, v%d" % (vT[1], x))
                    a("v_add_f32 v%d, v%d, v%d" % (AC(f) + 2 * d, AC(f) + 2 * d, vT[0]))
                    a("v_add_f32 v%d, v%d, v%d" % (AC(f) + 2 * d + 1, AC(f) + 2 * d + 1, vT[1]))
        for ab in range(2):
            a.lds("ds_write_b128 v4, %s offset:%d" % (vr(AC(f) + 4 * ab), (2 * f + ab) * 1024), "fw")
    a.lwait_all()
    a("s_barrier")
    a("s_mul_i32 s3, s%d, 3072" % sW)
    a("v_add_u32 v4, s3, v%d" % vL16)
    for i in range(3):
        for ww in range(4):
            a.lds("ds_read_b128 %s, v4 offset:%d" % (vr(64 + (i * 4 + ww) * 4), ww * 12288 + i * 1024), "fr%d" % i)
    a("v_and_b32 v5, 15, v1")
    a("v_lshrrev_b32 v6, 4, v1")
    a("v_lshlrev_b32 v6, 3, v6")
    a("v_lshl_add_u32 v5, v5, 10, v6")
    a("s_mul_i32 s%d, s%d, %d" % (sPart, sB, 96 * 1024))
    a("s_lshl_b32 s3, s%d, 6" % sHP)
    a("s_add_u32 s%d, s%d, s3" % (sPart, sPart))
    for i in range(3):
        a("s_mul_i32 s3, s%d, 3" % sW)
        a("s_add_u32 s3, s3, %d" % i)
        a("s_lshr_b32 s%d, s3, 1" % sTmp)
        a("s_lshl_b32 s%d, s%d, 14" % (sTmp, sTmp))
        a("s_and_b32 s3, s3, 1")
        a("s_lshl_b32 s3, s3, 5")
        a("s_add_u32 s%d, s%d, s3" % (sTmp, sTmp))
        a("s_add_u32 s%d, s%d, s%d" % (sTmp, sTmp, sPart))
        a.lwait("fr%d" % i)
        b = 64 + i * 16
        for j in range(4):
            a("v_add_f32 v%d, v%d, v%d" % (b + j, b + j, b + 4 + j))
            a("v_add_f32 v%d, v%d, v%d" % (b + 8 + j, b + 8 + j, b + 12 + j))
        for j in range(4):
            a("v_add_f32 v%d, v%d, v%d" % (b + j, b + j, b + 8 + j))
        a("v_cvt_pk_bf16_f32 v%d, v%d, v%d" % (b, b, b + 1))
        a("v_cvt_pk_bf16_f32 v%d, v%d, v%d" % (b + 1, b + 2, b + 3))
        a("buffer_store_dwordx2 %s, v5, s[%d:%d], s%d offen" % (vr(b, 2), SOUT, SOUT + 3, sTmp))
    if ST:
        a("s_waitcnt vmcnt(0)")
        stamp(10)
        a("s_cmp_eq_u32 s%d, 0" % sW)
        a("s_cbranch_scc0 L_st")
        a("s_mul_i32 s3, s2, %d" % (NSTAMP * 8))
        a("s_add_u32 s3, s3, 0x%x" % STAMPB)
        a("v_mov_b32 v2, 0")
        a("v_cmp_eq_u32 vcc, 0, v1")
        a("s_and_saveexec_b64 s[72:73], vcc")
        for i in range(11):
            a("v_mov_b32 v4, s%d" % (76 + 2 * i))
            a("v_mov_b32 v5, s%d" % (77 + 2 * i))
            a("buffer_store_dwordx2 v[4:5], v2, s[%d:%d], s3 offen offset:%d" % (SWS, SWS + 3, i * 8))
            a("s_waitcnt vmcnt(0)")
        a("s_mov_b64 exec, s[72:73]")
        a.lab("L_st")
    a("s_endpgm")
    for uid, buf in rare_blocks:
        rare(uid, buf)
    a.lab("L_end")
    a("s_endpgm")
    return a

def build(opts, verbose=False):
    k = gen(dict(opts))
    txt = header(["grid=(256,1,1) block=(256,1,1) lds=163840"], opts.get('comment', ""))
    lines, n = hazard.fix(k.lines, verbose, "g")
    errs = hazard.check_counters(lines, "g")
    for e in errs[:20]: print("ERR", e)
    if verbose: print("nops inserted:", n, "lines:", len(lines))
    txt += "\n".join(lines) + "\n"
    e = hazard.lint_srd(txt)
    assert not e, e
    txt += descriptor(KNAME, 512, 100, 256)
    return txt

if __name__ == "__main__":
    v = "-v" in sys.argv
    open("g2.s", "w").write(build(dict(), v))
    open("g2_st.s", "w").write(build(dict(stamps=True)))
    open("g2_same.s", "w").write(build(dict(stamps=True, kvsame=True)))
```

```python
import sys, math, struct
from asmlib import *
import hazard

C_SCALE = math.log2(math.e) / math.sqrt(128.0)
def fbits(x): return struct.unpack("<I", struct.pack("<f", x))[0]
PBASE = 0x0
FLAGB = 0x2000000
STAMPB = 0x1F000000
NSTAMP = 12

class G(Asm):
    def __init__(self):
        super().__init__()
        self.vm = []; self.lg = []
    def vmem(self, s, tag):
        self(s); self.vm.append(tag)
    def vcount(self, tag):
        idx = max(i for i, t in enumerate(self.vm) if t == tag)
        n = len(self.vm) - 1 - idx
        self.vm = self.vm[idx + 1:]
        assert n <= 63
        return n
    def vwait(self, tag):
        if tag not in self.vm: return
        self("s_waitcnt vmcnt(%d)" % self.vcount(tag))
    def lds(self, s, tag):
        self(s); self.lg.append(tag)
        assert len(self.lg) <= 15, ("lds overflow", s)
    def lwait(self, tag):
        if tag not in self.lg: return
        idx = max(i for i, t in enumerate(self.lg) if t == tag)
        n = len(self.lg) - 1 - idx
        self.lg = self.lg[idx + 1:]
        self("s_waitcnt lgkmcnt(%d)" % n)
    def lwait_all(self):
        if self.lg:
            self("s_waitcnt lgkmcnt(0)"); self.lg = []

def run_gaps(n, mf, pre, fill):
    for g in range(n):
        for f in pre.get(g, []): f()
        mf[g]()
        for f in fill.get(g, []): f()
def spread(fill, items, g0, g1):
    n = len(items); m = g1 - g0
    for k, it in enumerate(items):
        g = g0 + (k * m) // n
        fill.setdefault(g, []).append(it)

def gen(opts):
    a = G()
    ST = opts.get('stamps')
    def cstamp(idx):
        a("s_memtime s[%d:%d]" % (76 + 2 * idx, 77 + 2 * idx))
    def stamp(idx, o=False):
        if not ST: return
        if (opts.get('odiag') or opts.get('qd') is not None) and not o and idx not in (0, 10): return
        a("s_memrealtime s[%d:%d]" % (76 + 2 * idx, 77 + 2 * idx))
        a("s_waitcnt lgkmcnt(0)")
        a.lg = []
    NT = " nt" if opts.get('nt', True) else ""
    WNT = opts.get('wq_flags', ""); XNT = opts.get('x_flags', ""); WOF = opts.get('wo_flags', "")
    PST = opts.get('p_st', " sc1"); PLD = opts.get('p_ld', " sc1")
    ROT = opts.get('rot', True)
    T_LOG2 = opts.get('T', 8.0)
    vKd = [10, 11, 12, 13]; vVd = [14, 15]; vWd = 16; vXd = [17, 9]; aX = [7, 8]
    aK = [18, 19, 20, 21]; aV = list(range(22, 30)); aW = [30, 31, 32, 33]
    vMC = [34, 35, 36]; vT = list(range(37, 46))
    vWo = [30, 31]; vL16 = 32
    Sb = lambda buf, kt, qt: 52 + 24 * buf + (kt * 3 + qt) * 4
    P = lambda qt: 100 + 4 * qt
    O = lambda dt, qt: 152 + (dt * 3 + qt) * 4
    Xf = lambda ks, qt: 52 + (ks * 3 + qt) * 4
    Qa = lambda s, qt: (s * 3 + qt) * 4
    La = lambda qt: 48 + 4 * qt
    ONES = 60
    Kf = lambda s, kt: 64 + (s * 2 + kt) * 4
    Vf = lambda dt: 96 + 4 * dt
    Wf = lambda buf, dt: 128 + buf * 32 + dt * 4
    vr = lambda b, n=4: "v[%d:%d]" % (b, b + n - 1)
    ar = lambda b, n=4: "a[%d:%d]" % (b, b + n - 1)
    sW = 40; sH0 = 41; sB = 42; sQH = 43; sKV = 44; sCur = 45; sPrev = 46; sDK = 47; sWoff = 48; sT = 49
    sXo = 50; sP = 51; sC0 = 52; sWq = 53; sC = 54; sTmp = 55; sTmp2 = 56; sDV = 57
    sHP = 58; sW8k = 59; sW3k = 60; sCh = 61; sChX = 62; sWoB = 63; sR0 = 64; sPart = 65; sN = 66
    sNxt = 68; sCB = 69; sM0 = 70
    SX, SK, SV, SWQ, SWS, SWO, SOUT, SDBG = 20, 24, 28, 32, 36, 4, 8, 12

    a(kernel_begin(KNAME))
    a("s_cmp_ge_u32 s2, 256")
    a("s_cbranch_scc1 L_end")
    stamp(0)
    a("s_load_dwordx16 s[52:67], s[0:1], 0")
    a("v_lshrrev_b32 v2, 6, v0")
    a("v_and_b32 v1, 63, v0")
    a("v_readfirstlane_b32 s%d, v2" % sW)
    a("v_lshrrev_b32 v2, 4, v1")
    a("v_and_b32 v3, 15, v1")
    a("v_lshlrev_b32 v4, 2, v2")
    a("v_xor_b32 v4, v3, v4")
    a("v_lshlrev_b32 v4, 4, v4")
    a("v_lshl_add_u32 v%d, v2, 13, v4" % vWd)
    a("v_and_b32 v5, 7, v1")
    a("v_lshrrev_b32 v6, 3, v1")
    for jp in range(2):
        a("s_add_u32 s3, s%d, %d" % (sW, jp))
        a("s_and_b32 s3, s3, 1")
        a("s_lshl_b32 s3, s3, 2")
        a("v_add_u32 v4, s3, v2")
        a("v_xor_b32 v4, v5, v4")
        a("v_lshlrev_b32 v4, 4, v4")
        a("v_lshl_add_u32 v%d, v6, 10, v4" % vXd[jp])
    a("s_and_b32 s16, s2, 7")
    a("s_lshr_b32 s17, s2, 3")
    a("s_and_b32 s18, s16, 3")
    a("s_lshl_b32 s18, s18, 2")
    a("s_and_b32 s3, s17, 3")
    a("s_add_u32 s18, s18, s3")
    a("s_lshl_b32 s%d, s18, 1" % sH0)
    a("s_lshr_b32 s%d, s16, 2" % sB)
    a("s_lshl_b32 s%d, s%d, 3" % (sB, sB))
    a("s_lshr_b32 s17, s17, 2")
    a("s_add_u32 s%d, s%d, s17" % (sB, sB))
    if ROT:
        a("s_lshl_b32 s3, s3, 1")
        a("s_add_u32 s3, s3, s17")
        a("s_and_b32 s19, s3, 7")
        a("s_and_b32 s17, s17, 3")
    else:
        a("s_mov_b32 s19, 0")
        a("s_mov_b32 s17, 0")
    a("s_lshr_b32 s%d, s%d, 1" % (sP, sW))
    a("s_and_b32 s%d, s%d, 1" % (sQH, sW))
    a("s_mul_i32 s%d, s%d, 96" % (sXo, sB))
    a("s_mul_i32 s3, s%d, 24" % sW)
    a("s_add_u32 s%d, s%d, s3" % (sXo, sXo))
    a("s_lshl_b32 s%d, s%d, 10" % (sXo, sXo))
    a("s_waitcnt lgkmcnt(0)")
    srd(a, SWQ, 58, 0x400000)
    srd(a, SX, 52, 16 * 96 * 512 * 2)
    srd(a, SK, 54, 0x8000000)
    srd(a, SV, 56, 0x8000000)
    srd(a, SWO, 60, 0x400000)
    srd(a, SOUT, 62, 16 * 96 * 512 * 2)
    srd(a, SDBG, 64, 256)
    srd(a, SWS, 66, 0x20000000)
    a("s_mov_b32 s%d, s18" % sHP)
    a("s_mov_b32 s%d, s19" % sC0)
    a("s_mov_b32 s%d, s17" % sR0)
    a("s_lshl_b32 s%d, s%d, 18" % (sWq, sQH))
    a("s_add_u32 s3, s%d, s%d" % (sH0, sP))
    a("s_lshl_b32 s3, s3, 8")
    a("s_add_u32 s%d, s%d, s3" % (sWq, sWq))
    a("s_lshl_b32 s%d, s%d, 13" % (sW8k, sW))
    a("s_mul_i32 s%d, s%d, 3072" % (sW3k, sW))

    CB = [28672, 73728, 118784]
    def cbase(i): return CB[(i + 1) % 3]
    def C_items(i):
        items = []
        def head():
            a("s_add_u32 s%d, s%d, %d" % (sCh, sC0, i))
            a("s_and_b32 s%d, s%d, 7" % (sCh, sCh))
            a("s_lshl_b32 s%d, s%d, 7" % (sChX, sCh))
            a("s_add_u32 s%d, s%d, s%d" % (sChX, sChX, sXo))
            a("s_lshl_b32 s%d, s%d, 19" % (sCh, sCh))
            a("s_add_u32 s%d, s%d, s%d" % (sCh, sCh, sWq))
        def wq(jj):
            if jj == 0: head()
            a("s_add_u32 m0, s%d, %d" % (sW8k, cbase(i) + jj * 1024))
            a("s_add_u32 s%d, s%d, %d" % (sTmp, sCh, 4 * jj * 8192))
            a.vmem("buffer_load_dwordx4 v%d, s[%d:%d], s%d offen%s lds" % (vWd, SWQ, SWQ + 3, sTmp, WNT), "C%d" % i)
        def xx(j):
            a("s_add_u32 m0, s%d, %d" % (sW3k, cbase(i) + 32768 + j * 1024))
            a("s_add_u32 s%d, s%d, %d" % (sTmp, sChX, 8 * j * 1024))
            a.vmem("buffer_load_dwordx4 v%d, s[%d:%d], s%d offen%s lds" % (vXd[j & 1], SX, SX + 3, sTmp, XNT), "C%d" % i)
        for jj in range(8): items.append(lambda jj=jj: wq(jj))
        for j in range(3): items.append(lambda j=j: xx(j))
        return items
    for it in C_items(0) + C_items(1): it()
    later_C2 = True

    for jj in range(4):
        a("v_add_u32 v4, %d, v2" % (4 * jj))
        a("v_xor_b32 v4, v3, v4")
        a("v_lshlrev_b32 v4, 4, v4")
        a("v_lshl_add_u32 v%d, v2, 8, v4" % vKd[jj])
    for jp in range(2):
        a("v_add_u32 v4, %d, v2" % (4 * jp))
        a("v_lshlrev_b32 v4, 1, v4")
        a("v_xor_b32 v4, v3, v4")
        a("v_lshlrev_b32 v4, 4, v4")
        a("v_lshl_add_u32 v%d, v2, 8, v4" % vVd[jp])
    a("s_lshl_b32 s%d, s%d, 13" % (sWoff, sP))
    a("s_lshl_b32 s3, s%d, 12" % sQH)
    a("s_add_u32 s%d, s%d, s3" % (sWoff, sWoff))
    a("s_lshl_b32 s%d, s%d, 5" % (sKV, sB))
    a("s_add_u32 s%d, s%d, s%d" % (sKV, sKV, sH0))
    a("s_add_u32 s%d, s%d, s%d" % (sKV, sKV, sP))
    a("s_lshl_b32 s%d, s%d, 18" % (sKV, sKV))
    a("s_add_u32 s%d, s%d, s3" % (sKV, sKV))

    def KV_items(tag, slot_sgpr=None, slot_const=None, which="KV", goff=None):
        items = []
        def mk(n, first, last):
            def f():
                isv = n >= 4; jj = n & 3
                mixed = opts.get('_mixed')
                if slot_sgpr is not None:
                    if first: a("s_add_u32 s%d, s%d, s%d" % (sM0, slot_sgpr, sWoff))
                    if jj == 0 or mixed: a("s_add_u32 m0, s%d, %d" % (sM0, 16384 if isv else 0))
                else:
                    if jj == 0 or mixed: a("s_add_u32 m0, s%d, %d" % (sWoff, slot_const + (16384 if isv else 0)))
                so = sKV
                if goff:
                    a("s_add_u32 s%d, s%d, %d" % (sTmp, sKV, goff)); so = sTmp
                elif jj == 0 or mixed: a("s_nop 0")
                if isv:
                    a.vmem("buffer_load_dwordx4 v%d, s[%d:%d], s%d offen offset:%d%s lds" % (vVd[jj & 1], SV, SV + 3, so, jj * 1024, NT), tag)
                else:
                    a.vmem("buffer_load_dwordx4 v%d, s[%d:%d], s%d offen offset:%d%s lds" % (vKd[jj], SK, SK + 3, so, jj * 1024, NT), tag)
                if last and goff is None:
                    a("s_add_u32 s%d, s%d, %d" % (sKV, sKV, 0 if opts.get('kvsame') else 8192))
            return f
        ns = [n for n in range(8) if (n < 4 and "K" in which) or (n >= 4 and "V" in which)]
        return [mk(n, k == 0, k == len(ns) - 1) for k, n in enumerate(ns)]

    a("v_lshrrev_b32 v5, 2, v3")
    a("v_and_b32 v6, 3, v1")
    a("s_lshl_b32 s3, s%d, 13" % sP)
    for s in range(4):
        a("v_add_u32 v4, %d, v2" % (4 * s))
        a("v_xor_b32 v4, v4, v3")
        a("v_lshlrev_b32 v4, 4, v4")
        a("v_lshl_add_u32 v4, v3, 8, v4")
        a("v_add_u32 v%d, s3, v4" % aK[s])
    a("v_lshl_add_u32 v4, v2, 2, v5")
    a("v_and_b32 v0, 7, v4")
    a("v_lshlrev_b32 v0, 5, v0")
    a("v_lshl_add_u32 v0, v4, 8, v0")
    a("v_lshl_add_u32 v0, v6, 3, v0")
    a("s_add_u32 s%d, s3, 16384" % sTmp)
    a("v_add_u32 v%d, s%d, v0" % (aV[0], sTmp))
    a("s_lshl_b32 s3, s%d, 14" % sP)
    for dt in range(1, 8):
        a("v_xor_b32 v%d, %d, v%d" % (aV[dt], dt << 5, aV[0]))
    a("v_lshl_add_u32 v4, v2, 3, v5")
    a("v_lshlrev_b32 v4, 8, v4")
    a("v_lshl_add_u32 v4, v6, 4, v4")
    a("v_add_u32 v4, s3, v4")
    for sp in range(4):
        a("v_xor_b32 v7, %d, v5" % sp)
        a("v_lshl_add_u32 v%d, v7, 6, v4" % aW[sp])
    a("v_lshrrev_b32 v4, 1, v3")
    a("s_mul_i32 s3, s%d, 6144" % sQH)
    a("s_add_u32 s3, s3, 32768")
    for ks in range(2):
        a("v_add_u32 v5, %d, v2" % (4 * ks))
        a("v_xor_b32 v5, v5, v4")
        a("v_lshlrev_b32 v5, 4, v5")
        a("v_lshl_add_u32 v5, v3, 7, v5")
        a("v_add_u32 v%d, s3, v5" % aX[ks])
    a("s_mov_b32 s%d, 0x%x" % (sC, fbits(C_SCALE)))
    a("v_mov_b32 v4, 0x3f803f80")
    for i in range(4):
        a("v_accvgpr_write_b32 a%d, v4" % (ONES + i))
    for i in range(12):
        a("v_accvgpr_write_b32 a%d, 0" % (48 + i))
    a("s_or_b32 s3, s2, s%d" % sW)
    a("s_cmp_eq_u32 s3, 0")
    a("s_cbranch_scc0 L_nononce")
    a("s_memrealtime s[%d:%d]" % (sN, sN + 1))
    a("s_waitcnt lgkmcnt(0)")
    a("s_or_b32 s%d, s%d, 1" % (sN, sN))
    a("v_mov_b32 v4, s%d" % sN)
    a("v_mov_b32 v5, s%d" % (sN + 1))
    a("v_mov_b32 v6, 0")
    a("buffer_store_dwordx2 v[4:5], v6, s[%d:%d], 0 offen sc1" % (SDBG, SDBG + 3))
    a.lab("L_nononce")

    tW = [vT[0], vT[1], vT[2], vT[3]]; tX = [vT[4], vT[5]]
    opts['_mixed'] = True
    step_off = 0 if opts.get('kvsame') else 8192
    def touch_items():
        TF = opts.get('touch_flags', "")
        def prep():
            a("v_lshlrev_b32 v5, 7, v1")
            a("s_and_b32 s%d, s%d, 0xfffc0000" % (sTmp2, sKV))
            a("s_add_u32 s3, s%d, 1" % sQH)
            a("s_lshl_b32 s3, s3, 13")
            a("s_add_u32 s%d, s%d, s3" % (sTmp2, sTmp2))
        def tk():
            prep()
            a.vmem("buffer_load_dword v46, v5, s[%d:%d], s%d offen%s" % (SK, SK + 3, sTmp2, TF), "T")
        def tv():
            prep()
            a.vmem("buffer_load_dword v47, v5, s[%d:%d], s%d offen%s" % (SV, SV + 3, sTmp2, TF), "T")
        return [tk, tv]
    def x_read(i, ks, qt): a.lds("ds_read_b128 %s, v%d offset:%d" % (vr(Xf(ks, qt)), tX[ks], qt * 2048), "x%d" % ks)
    def w_read(tl, dt, u):
        sp, ab = dt >> 1, dt & 1
        a.lds("ds_read_b64_tr_b16 %s, v%d offset:%d" % (ar(Wf(tl, dt) + 2 * u, 2), tW[sp], tl * 8192 + u * 1024 + ab * 8), "w%d_%d" % (tl, dt))
    W = lambda tl, dts: [(lambda tl=tl, dt=dt, u=u: w_read(tl, dt, u)) for dt in dts for u in range(2)]
    def q_addr(i):
        return [(lambda sp=sp: a("v_add_u32 v%d, %d, v%d" % (tW[sp], cbase(i), aW[sp]))) for sp in range(4)] + \
               [(lambda ks=ks: a("v_add_u32 v%d, %d, v%d" % (tX[ks], cbase(i), aX[ks]))) for ks in range(2)]
    def q_first(i):
        return [(lambda qt=qt: x_read(i, 0, qt)) for qt in range(3)] + W(0, range(0, 4))
    win = {}
    for i in range(0, 5): win[i] = C_items(i + 3)
    win[5] = KV_items("KV0", slot_const=0, which="V", goff=None) + KV_items("KV1", slot_const=32768) if False else None
    k0 = KV_items("K0", slot_const=0, which="K", goff=0)
    win[5] = KV_items("V0", slot_const=0, which="V") + KV_items("KV1", slot_const=32768)
    win[6] = KV_items("KV2", slot_const=65536)
    win[7] = KV_items("KV3", slot_const=98304)
    TOUCH = opts.get('touch', True)
    pending = C_items(2) + k0 + (touch_items() if TOUCH else [])
    a.vwait("C0")
    stamp(1)
    a("s_barrier")
    for f in q_addr(0) + q_first(0): f()
    LB = 36
    for i in range(8):
        mf = []; pre = {}; fill = {}
        for tl in range(2):
            for dt in range(8):
                for qt in range(3):
                    c = "0" if (i == 0 and tl == 0) else vr(O(dt, qt))
                    mf.append(lambda tl=tl, dt=dt, qt=qt, c=c: a("v_mfma_f32_16x16x32_bf16 %s, %s, %s, %s" % (vr(O(dt, qt)), ar(Wf(tl, dt)), vr(Xf(tl, qt)), c)))
        for tl in range(2):
            for dt in (1, 3, 5, 7):
                g = tl * 24 + (dt - 1) * 3
                pre.setdefault(g, []).append(lambda tl=tl, dt=dt: a.lwait("w%d_%d" % (tl, dt)))
        spread(fill, W(0, range(4, 8)), 0, 6)
        spread(fill, [lambda qt=qt, i=i: x_read(i, 1, qt) for qt in range(3)] + W(1, range(0, 4)), 12, 20)
        spread(fill, W(1, range(4, 8)), 24, 30)
        qd = opts.get('qd')
        def late(i=i):
            a.lwait("w1_7")
            if qd == i: stamp(4, True)
            if i < 7: a.vwait("C%d" % (i + 1))
            if qd == i: stamp(5, True)
            if i in (2, 6): stamp({2: 2, 6: 3}[i])
            a("s_barrier")
            if qd == i: stamp(6, True)
        if qd == i:
            pre.setdefault(0, []).insert(0, lambda: stamp(1, True))
            pre.setdefault(12, []).insert(0, lambda: stamp(2, True))
            pre.setdefault(24, []).insert(0, lambda: stamp(3, True))
        if qd == i - 1:
            pre.setdefault(0, []).insert(0, lambda: stamp(7, True))
        pre.setdefault(LB, []).append(late)
        w = win.get(i, [])
        nfirst = (len(w) * (48 - LB)) // 46
        if i == 7: nfirst = len(w)
        if pending: spread(fill, pending, 0, LB - 2)
        if nfirst: spread(fill, w[:nfirst], LB + 1, 48)
        pending = w[nfirst:]
        if i < 7:
            spread(fill, q_addr(i + 1), LB, LB + 2)
            spread(fill, q_first(i + 1), LB + 2, 48)
        run_gaps(48, mf, pre, fill)
    assert not pending and not a.lg, (pending, a.lg)
    opts['_mixed'] = False
    for sp in range(4):
        for qt in range(3):
            for ab in range(2):
                o = O(2 * sp + ab, qt)
                a("v_cvt_pk_bf16_f32 v%d, v%d, v%d" % (vT[0 + 2 * ab], o, o + 1))
                a("v_cvt_pk_bf16_f32 v%d, v%d, v%d" % (vT[1 + 2 * ab], o + 2, o + 3))
            for i in range(4):
                a("v_accvgpr_write_b32 a%d, v%d" % (Qa(sp, qt) + i, vT[i]))
    for jp in range(2):
        a("v_add_u32 v4, %d, v2" % (4 * jp))
        a("v_lshlrev_b32 v4, 1, v4")
        a("v_xor_b32 v4, v3, v4")
        a("v_lshlrev_b32 v4, 4, v4")
        a("v_lshl_add_u32 v%d, v2, 10, v4" % vWo[jp])
    a("v_lshlrev_b32 v%d, 4, v1" % vL16)
    a("s_lshl_b32 s%d, s%d, 17" % (sWoB, sH0))
    a("s_lshl_b32 s3, s%d, 15" % sW)
    a("s_add_u32 s%d, s%d, s3" % (sWoB, sWoB))
    stamp(4)

    def k_read(s, kt): a.lds("ds_read_b128 %s, v%d offset:%d" % (ar(Kf(s, kt)), aK[s], kt * 4096), "k%d" % s)
    def v_read(dt, u): a.lds("ds_read_b64_tr_b16 %s, v%d offset:%d" % (ar(Vf(dt) + 2 * u, 2), aV[dt], u * 4096), "v%d" % dt)
    def qk_mfma(buf, m):
        s, kt, qt = m // 6, (m % 6) // 3, m % 3
        c = "0" if s == 0 else vr(Sb(buf, kt, qt))
        a("v_mfma_f32_16x16x32_bf16 %s, %s, %s, %s" % (vr(Sb(buf, kt, qt)), ar(Kf(s, kt)), ar(Qa(s, qt)), c))

    for s in range(4):
        for kt in range(2): k_read(s, kt)
    for i in range(96):
        a("v_mov_b32 v%d, 0" % (152 + i))
    for m in range(24):
        if m % 6 == 0: a.lwait("k%d" % (m // 6))
        qk_mfma(0, m)
    for s in range(4):
        a("v_add_u32 v%d, 32768, v%d" % (aK[s], aK[s]))
    for qt in range(3):
        s0, s1 = Sb(0, 0, qt), Sb(0, 1, qt)
        mx, t = vT[0], vT[1]
        a("v_max3_f32 v%d, v%d, v%d, v%d" % (mx, s0, s0 + 1, s0 + 2))
        a("v_max3_f32 v%d, v%d, v%d, v%d" % (t, s0 + 3, s1, s1 + 1))
        a("v_max3_f32 v%d, v%d, v%d, v%d" % (mx, mx, s1 + 2, s1 + 3))
        a("v_max_f32 v%d, v%d, v%d" % (mx, mx, t))
        a("v_mov_b32 v%d, v%d" % (t, mx))
        a("v_permlane16_swap_b32 v%d, v%d" % (t, mx))
        a("v_max_f32 v%d, v%d, v%d" % (mx, mx, t))
        a("v_mov_b32 v%d, v%d" % (t, mx))
        a("v_permlane32_swap_b32 v%d, v%d" % (t, mx))
        a("v_max_f32 v%d, v%d, v%d" % (mx, mx, t))
        a("v_mul_f32 v%d, s%d, v%d" % (vMC[qt], sC, mx))
    a("s_mov_b32 s%d, 0" % sCur)
    a("s_mov_b32 s%d, 32768" % sNxt)
    a("s_mov_b32 s%d, 131072" % sPrev)
    a("s_mov_b32 s%d, 0" % sT)
    assert a.vm[-16:] == ["KV2"] * 8 + ["KV3"] * 8, a.vm

    rare_blocks = []
    def step(vmn, dma_items, uid, buf, qk=True, throttle_ok=True):
        a("s_waitcnt vmcnt(%d)" % vmn)
        a("s_barrier")
        if qk:
            for s in range(4):
                for kt in range(2): k_read(s, kt)
        V = lambda dts: [(lambda dt=dt, u=u: v_read(dt, u)) for dt in dts for u in range(2)]
        for f in V(range(0, 3)): f()
        def fma(qt, j):
            r = Sb(buf, j >> 2, qt) + (j & 3)
            a("v_fma_f32 v%d, v%d, s%d, -v%d" % (r, r, sC, vMC[qt]))
        def ex(qt, j):
            r = Sb(buf, j >> 2, qt) + (j & 3)
            a("v_exp_f32 v%d, v%d" % (r, r))
        def cv(qt, j):
            kt, h = j >> 1, j & 1
            s0 = Sb(buf, kt, qt) + 2 * h
            a("v_cvt_pk_bf16_f32 v%d, v%d, v%d" % (P(qt) + 2 * kt + h, s0, s0 + 1))
        FM = lambda qt: [(lambda j=j: fma(qt, j)) for j in range(8)]
        EX = lambda qt: [(lambda j=j: ex(qt, j)) for j in range(8)]
        CV = lambda qt: [(lambda j=j: cv(qt, j)) for j in range(4)]
        allr = [Sb(buf, j >> 2, qt) + (j & 3) for qt in range(3) for j in range(8)]
        MX = []
        t = vT[0:4]
        for k in range(4):
            r = allr[6 * k:6 * k + 6]
            MX.append(lambda k=k, r=r: a("v_max3_f32 v%d, v%d, v%d, v%d" % (t[k], r[0], r[1], r[2])))
            MX.append(lambda k=k, r=r: a("v_max3_f32 v%d, v%d, v%d, v%d" % (t[k], t[k], r[3], r[4])))
        r5 = [allr[6 * k + 5] for k in range(4)]
        MX.append(lambda: a("v_max3_f32 v%d, v%d, v%d, v%d" % (t[0], t[0], t[1], r5[0])))
        MX.append(lambda: a("v_max3_f32 v%d, v%d, v%d, v%d" % (t[2], t[2], t[3], r5[1])))
        MX.append(lambda: a("v_max3_f32 v%d, v%d, v%d, v%d" % (t[0], t[0], r5[2], r5[3])))
        MX.append(lambda: a("v_max_f32 v%d, v%d, v%d" % (t[0], t[0], t[2])))
        def chk():
            a("v_cmp_lt_f32 vcc, 0x%x, v%d" % (fbits(T_LOG2), t[0]))
            a("s_cbranch_vccnz L_rare_%s" % uid)
            a.lab("L_cont_%s" % uid)
        rare_blocks.append((uid, buf))
        def pv(g):
            qt, k = g // 9, g % 9
            if k == 0:
                a("v_mfma_f32_16x16x32_bf16 %s, %s, %s, %s" % (ar(La(qt)), ar(ONES), vr(P(qt)), ar(La(qt))))
            else:
                dt = k - 1
                a("v_mfma_f32_16x16x32_bf16 %s, %s, %s, %s" % (vr(O(dt, qt)), ar(Vf(dt)), vr(P(qt)), vr(O(dt, qt))))
        def slots():
            a("s_mov_b32 s%d, s%d" % (sPrev, sCur))
            a("s_mov_b32 s%d, s%d" % (sCur, sNxt))
            a("s_add_u32 s%d, s%d, 32768" % (sNxt, sNxt))
            a("s_cmp_eq_u32 s%d, 163840" % sNxt)
            a("s_cselect_b32 s%d, 0, s%d" % (sNxt, sNxt))
            a("s_sub_u32 s%d, s%d, s%d" % (sDK, sNxt, sCur))
            a("s_sub_u32 s%d, s%d, s%d" % (sDV, sCur, sPrev))
        ADDR = [(lambda r=r: a("v_add_u32 v%d, s%d, v%d" % (r, sDK, r))) for r in aK] + \
               [(lambda r=r: a("v_add_u32 v%d, s%d, v%d" % (r, sDV, r))) for r in aV]
        if qk:
            for f in FM(0): f()
            mf = [(lambda m=m: qk_mfma(buf ^ 1, m)) for m in range(24)] + [(lambda g=g: pv(g)) for g in range(27)]
            pre = {0: [lambda: a.lwait("k0")], 6: [lambda: a.lwait("k1")], 12: [lambda: a.lwait("k2")], 18: [lambda: a.lwait("k3")],
                   25: [lambda: a.lwait("v3")], 29: [lambda: a.lwait("v7")]}
            fill = {}
            spread(fill, FM(1) + FM(2), 0, 6)
            spread(fill, MX, 6, 10)
            spread(fill, V(range(3, 5)), 6, 10)
            fill.setdefault(9, []).append(chk)
            spread(fill, EX(0) + CV(0) + EX(1), 10, 18)
            spread(fill, V(range(5, 6)), 12, 14)
            spread(fill, V(range(6, 7)), 18, 20)
            spread(fill, CV(1) + EX(2), 18, 24)
            fill.setdefault(21, []).append(lambda: a.lwait("v0"))
            spread(fill, V(range(7, 8)), 21, 23)
            spread(fill, CV(2), 24, 27)
            d0, d1 = opts.get('dspread', (26, 42))
            TH = opts.get('throttle')
            if TH and throttle_ok:
                dma_items = [(lambda f=f: (a("s_waitcnt vmcnt(%d)" % (TH - 1)), f())) for f in dma_items]
            spread(fill, dma_items, d0, d1)
            fill.setdefault(max(41, d1 - 1), []).append(slots)
            spread(fill, ADDR, max(42, d1), 51) if d1 < 50 else spread(fill, ADDR, 50, 51)
            run_gaps(51, mf, pre, fill)
        else:
            for f in V(range(3, 7)): f()
            for f in FM(0) + FM(1) + FM(2) + MX: f()
            chk()
            a.lwait("v3")
            for f in V(range(7, 8)): f()
            for f in EX(0) + CV(0): f()
            mf = [(lambda g=g: pv(g)) for g in range(27)]
            pre = {1: [lambda: a.lwait("v3")], 5: [lambda: a.lwait("v7")]}
            fill = {}
            spread(fill, EX(1) + CV(1), 0, 8)
            spread(fill, EX(2) + CV(2), 9, 17)
            spread(fill, dma_items, 18, 26)
            run_gaps(27, mf, pre, fill)
        assert not a.lg, a.lg

    def rare(uid, buf):
        a.lab("L_rare_%s" % uid)
        for qt in range(3):
            s0, s1 = Sb(buf, 0, qt), Sb(buf, 1, qt)
            mx, t = vT[4], vT[5]
            a("v_max3_f32 v%d, v%d, v%d, v%d" % (mx, s0, s0 + 1, s0 + 2))
            a("v_max3_f32 v%d, v%d, v%d, v%d" % (t, s0 + 3, s1, s1 + 1))
            a("v_max3_f32 v%d, v%d, v%d, v%d" % (mx, mx, s1 + 2, s1 + 3))
            a("v_max3_f32 v%d, v%d, v%d, 0" % (mx, mx, t))
            a("v_mov_b32 v%d, v%d" % (t, mx))
            a("v_permlane16_swap_b32 v%d, v%d" % (t, mx))
            a("v_max_f32 v%d, v%d, v%d" % (mx, mx, t))
            a("v_mov_b32 v%d, v%d" % (t, mx))
            a("v_permlane32_swap_b32 v%d, v%d" % (t, mx))
            a("v_max_f32 v%d, v%d, v%d" % (mx, mx, t))
            a("v_add_f32 v%d, v%d, v%d" % (vMC[qt], vMC[qt], mx))
            for j in range(4):
                a("v_sub_f32 v%d, v%d, v%d" % (s0 + j, s0 + j, mx))
                a("v_sub_f32 v%d, v%d, v%d" % (s1 + j, s1 + j, mx))
            a("v_sub_f32 v%d, 0, v%d" % (t, mx))
            a("v_exp_f32 v%d, v%d" % (t, t))
            a("s_nop 0")
            for dt in range(8):
                for j in range(4):
                    a("v_mul_f32 v%d, v%d, v%d" % (O(dt, qt) + j, t, O(dt, qt) + j))
            for j in range(4):
                a("v_accvgpr_read_b32 v%d, a%d" % (mx, La(qt) + j))
                a("v_mul_f32 v%d, v%d, v%d" % (mx, t, mx))
                a("v_accvgpr_write_b32 a%d, v%d" % (La(qt) + j, mx))
        a("s_branch L_cont_%s" % uid)

    saved_vm = list(a.vm)
    a.lab("L_loop")
    step(16, KV_items("KVx", slot_sgpr=sPrev), "m0", 0)
    step(16, KV_items("KVx", slot_sgpr=sPrev), "m1", 1)
    a("s_add_u32 s%d, s%d, 2" % (sT, sT))
    a("s_cmp_lt_u32 s%d, 28" % sT)
    a("s_cbranch_scc1 L_loop")
    a.vm = ["KV29"] * 8 + ["KV30"] * 8 + ["KV31"] * 8

    HSLOT = [65536, 98304, 131072, 0, 32768, 65536, 98304, 131072]
    def H_items(H):
        r, half = H >> 1, H & 1
        def one(jj):
            if jj == 0:
                a("s_add_u32 s%d, s%d, %d" % (sCB, sR0, r))
                a("s_and_b32 s%d, s%d, 3" % (sCB, sCB))
                a("s_lshl_b32 s%d, s%d, 8" % (sCB, sCB))
                a("s_add_u32 s%d, s%d, s%d" % (sCB, sCB, sWoB))
            a("s_add_u32 m0, s%d, %d" % (sW8k, HSLOT[H] + jj * 1024))
            a("s_add_u32 s%d, s%d, %d" % (sTmp, sCB, (128 * half + 4 * jj) * 1024))
            a.vmem("buffer_load_dwordx4 v%d, s[%d:%d], s%d offen%s lds" % (vWo[jj & 1], SWO, SWO + 3, sTmp, WOF), "H%d" % H)
        return [(lambda jj=jj: one(jj)) for jj in range(8)]
    def nonce_load():
        a("v_mov_b32 v4, 0")
        a.vmem("buffer_load_dwordx2 v[2:3], v4, s[%d:%d], 0 offen sc1" % (SDBG, SDBG + 3), "N")
    step(a.vcount("KV29"), H_items(0), "t0", 0, throttle_ok=False)
    step(a.vcount("KV30"), H_items(1), "t1", 1, throttle_ok=False)
    step(a.vcount("KV31"), H_items(2), "t2", 0, throttle_ok=False)
    step(len(a.vm), [nonce_load], "t3", 1, qk=False)
    stamp(5)

    F = lambda s, qt: 52 + (s * 3 + qt) * 4
    for qt in range(3):
        a("v_accvgpr_read_b32 v%d, a%d" % (vT[6 + qt], La(qt)))
    for qt in range(3):
        a("v_rcp_f32 v%d, v%d" % (vT[6 + qt], vT[6 + qt]))
    a("s_barrier")
    a("s_mul_i32 s3, s%d, 12288" % sW)
    a("v_add_u32 v4, s3, v%d" % vL16)
    for qt in range(3):
        for s in range(4):
            d = F(s, qt)
            for ab in range(2):
                o = O(2 * s + ab, qt)
                for j in range(4):
                    a("v_mul_f32 v%d, v%d, v%d" % (o + j, vT[6 + qt], o + j))
                a("v_cvt_pk_bf16_f32 v%d, v%d, v%d" % (d + 2 * ab, o, o + 1))
                a("v_cvt_pk_bf16_f32 v%d, v%d, v%d" % (d + 2 * ab + 1, o + 2, o + 3))
            a.lds("ds_write_b128 v4, %s offset:%d" % (vr(d), (s * 3 + qt) * 1024), "ex")
    a.lwait_all()
    a("s_barrier")
    Bo = lambda ks, qt: 152 + (ks * 3 + qt) * 4
    a("s_mul_i32 s3, s%d, 12288" % sQH)
    a("v_add_u32 v4, s3, v%d" % vL16)
    n = 0
    for pp in range(2):
        for s in range(4):
            for qt in range(3):
                if n == 12: a.lwait_all()
                a.lds("ds_read_b128 %s, v4 offset:%d" % (vr(Bo(4 * pp + s, qt)), pp * 24576 + (s * 3 + qt) * 1024), "bo")
                n += 1
    aO = [[34 + 4 * bb + nt for nt in range(4)] for bb in range(3)]
    a("s_lshl_b32 s3, s%d, 7" % sP)
    a("v_xor_b32 v%d, s3, v0" % aO[0][0])
    for nt in range(1, 4):
        a("v_xor_b32 v%d, %d, v%d" % (aO[0][nt], nt << 5, aO[0][0]))
    for bb in (1, 2):
        for nt in range(4):
            a("v_add_u32 v%d, %d, v%d" % (aO[bb][nt], 65536 * bb, aO[0][nt]))
    a("s_lshl_b32 s%d, s%d, 4" % (sPart, sB))
    a("s_add_u32 s%d, s%d, s%d" % (sPart, sPart, sHP))
    a("s_mul_i32 s%d, s%d, 96" % (sPart, sPart))
    a("s_mul_i32 s3, s%d, 3" % sQH)
    a("s_add_u32 s%d, s%d, s3" % (sPart, sPart))
    a("s_mul_i32 s3, s%d, 12" % sP)
    a("s_add_u32 s%d, s%d, s3" % (sPart, sPart))
    a("s_lshl_b32 s%d, s%d, 10" % (sPart, sPart))
    if PBASE: a("s_add_u32 s%d, s%d, %d" % (sPart, sPart, PBASE))
    a.lwait_all()
    stamp(6)

    ACC = lambda ab_, nt, qt: 52 + 48 * ab_ + (nt * 3 + qt) * 4
    Af = lambda buf, nt: 64 + buf * 16 + nt * 4
    STG = [148, 46]
    def a_read(H, kl, buf, nt, u):
        base = HSLOT[H] + kl * 8192
        bb, off = base >> 16, base & 0xffff
        a.lds("ds_read_b64_tr_b16 %s, v%d offset:%d" % (ar(Af(buf, nt) + 2 * u, 2), aO[bb][nt], off + u * 4096), "a%d_%d" % (H, kl))
    def A_items(H, kl): return [(lambda nt=nt, u=u: a_read(H, kl, kl & 1, nt, u)) for nt in range(4) for u in range(2)]
    def store_items(r):
        items = []
        acc = r & 1
        def head():
            a("s_add_u32 s%d, s%d, %d" % (sTmp2, sR0, r))
            a("s_and_b32 s%d, s%d, 3" % (sTmp2, sTmp2))
            a("s_mul_i32 s%d, s%d, %d" % (sTmp2, sTmp2, 24 * 1024))
            a("s_add_u32 s%d, s%d, s%d" % (sTmp2, sTmp2, sPart))
        k = 0
        for i in range(2):
            for qt in range(3):
                d = STG[k & 1]
                def cvt(i=i, qt=qt, d=d, ab=0, first=(k == 0)):
                    if first: head()
                    for ab in range(2):
                        o = ACC(acc, 2 * i + ab, qt)
                        a("v_cvt_pk_bf16_f32 v%d, v%d, v%d" % (d + 2 * ab, o, o + 1))
                        a("v_cvt_pk_bf16_f32 v%d, v%d, v%d" % (d + 2 * ab + 1, o + 2, o + 3))
                def st(i=i, qt=qt, d=d):
                    a("s_add_u32 s3, s%d, %d" % (sTmp2, (6 * i + qt) * 1024))
                    a.vmem("buffer_store_dwordx4 %s, v%d, s[%d:%d], s3 offen%s" % (vr(d), vL16, SWS, SWS + 3, PST), "P%d" % r)
                items += [cvt, st]
                k += 1
        return items
    a.vwait("H0")
    a("s_barrier")
    for f in A_items(0, 0): f()
    for H in range(8):
        r, half = H >> 1, H & 1
        dma = []
        if H == 0: dma = H_items(3) + H_items(4)
        elif H in (1, 2, 3): dma = H_items(H + 4)
        stores = []; st_range = (6, 46)
        if opts.get('late_st', True):
            if H == 3: stores = store_items(0); st_range = (18, 47)
            elif H in (4, 5): it = store_items(1); stores = it[:6] if H == 4 else it[6:]
            elif H in (6, 7): it = store_items(2); stores = it[:6] if H == 6 else it[6:]
        elif r > 0:
            it = store_items(r - 1)
            stores = it[:6] if half == 0 else it[6:]
        mf = []; pre = {}; fill = {}
        for kl in range(4):
            ks = 4 * half + kl
            for nt in range(4):
                for qt in range(3):
                    c = "0" if ks == 0 else vr(ACC(r & 1, nt, qt))
                    mf.append(lambda kl=kl, ks=ks, nt=nt, qt=qt, c=c: a("v_mfma_f32_16x16x32_bf16 %s, %s, %s, %s" % (vr(ACC(r & 1, nt, qt)), ar(Af(kl & 1, nt)), vr(Bo(ks, qt)), c)))
            pre[12 * kl] = [lambda H=H, kl=kl: a.lwait("a%d_%d" % (H, kl))]
            if kl < 3: spread(fill, A_items(H, kl + 1), 12 * kl + 1, 12 * kl + 9)
        if H < 7:
            def nextbar(H=H):
                a.vwait("H%d" % (H + 1))
                if not opts.get('no_obar'): a("s_barrier")
            pre[36].append(nextbar)
            spread(fill, A_items(H + 1, 0), 37, 45)
        if opts.get('no_hdma'): dma = []
        if opts.get('no_pst'): stores = []
        if dma: spread(fill, dma, 1, 17 if (H == 3 and opts.get('late_st', True)) else 34)
        if stores: spread(fill, stores, st_range[0], st_range[1])
        if opts.get('odiag') and H == 0: stamp(1, True)
        run_gaps(48, mf, pre, fill)
        if opts.get('odiag'): stamp(2 + H, True)
    for f in store_items(3): f()
    stamp(7)
    a("s_waitcnt vmcnt(0)")
    a.vm = []
    a("s_barrier")
    stamp(8)
    a("s_cmp_eq_u32 s%d, 0" % sW)
    a("s_cbranch_scc0 L_skip_sync")
    a("s_mov_b32 s%d, 0" % sT)
    a.lab("L_nonce_poll")
    a("s_add_u32 s%d, s%d, 1" % (sT, sT))
    a("s_cmp_gt_u32 s%d, 0x40000" % sT)
    a("s_cbranch_scc1 L_skip_sync")
    a("v_or_b32 v4, v2, v3")
    a("v_cmp_eq_u32 vcc, 0, v4")
    a("s_cbranch_vccz L_nonce_ok")
    a("s_sleep 2")
    a("v_mov_b32 v4, 0")
    a("buffer_load_dwordx2 v[2:3], v4, s[%d:%d], 0 offen sc1" % (SDBG, SDBG + 3))
    a("s_waitcnt vmcnt(0)")
    a("s_branch L_nonce_poll")
    a.lab("L_nonce_ok")
    a("s_lshl_b32 s%d, s%d, 7" % (sTmp, sB))
    a("s_add_u32 s%d, s%d, %d" % (sTmp, sTmp, FLAGB))
    a("s_lshl_b32 s3, s%d, 3" % sHP)
    a("v_mov_b32 v4, s3")
    a("buffer_store_dwordx2 v[2:3], v4, s[%d:%d], s%d offen sc1" % (SWS, SWS + 3, sTmp))
    a("v_and_b32 v5, 15, v1")
    a("v_lshlrev_b32 v5, 3, v5")
    a.lab("L_poll")
    a("s_add_u32 s%d, s%d, 1" % (sT, sT))
    a("s_cmp_gt_u32 s%d, 0x40000" % sT)
    a("s_cbranch_scc1 L_skip_sync")
    a("buffer_load_dwordx2 v[6:7], v5, s[%d:%d], s%d offen sc1" % (SWS, SWS + 3, sTmp))
    a("s_waitcnt vmcnt(0)")
    a("v_xor_b32 v6, v6, v2")
    a("v_xor_b32 v7, v7, v3")
    a("v_or_b32 v6, v6, v7")
    a("v_cmp_ne_u32 vcc, 0, v6")
    a("s_cbranch_vccz L_skip_sync")
    a("s_sleep 1")
    a("s_branch L_poll")
    a.lab("L_skip_sync")
    a("s_barrier")
    stamp(9)
    R = lambda i, f: 64 + (i * 6 + f) * 4
    a("s_lshl_b32 s%d, s%d, 4" % (sPart, sB))
    a("s_lshl_b32 s3, s%d, 2" % sW)
    a("s_add_u32 s%d, s%d, s3" % (sPart, sPart))
    a("s_mul_i32 s%d, s%d, 96" % (sPart, sPart))
    a("s_mul_i32 s3, s%d, 6" % sHP)
    a("s_add_u32 s%d, s%d, s3" % (sPart, sPart))
    a("s_lshl_b32 s%d, s%d, 10" % (sPart, sPart))
    if PBASE: a("s_add_u32 s%d, s%d, %d" % (sPart, sPart, PBASE))
    for f in range(6):
        for i in range(4):
            a("s_add_u32 s%d, s%d, %d" % (sTmp, sPart, (i * 96 + f) * 1024))
            a.vmem("buffer_load_dwordx4 %s, v%d, s[%d:%d], s%d offen%s" % (vr(R(i, f)), vL16, SWS, SWS + 3, sTmp, PLD), "R%d_%d" % (f, i))
    AC = lambda f: 160 + 8 * f
    a("s_mul_i32 s3, s%d, 12288" % sW)
    a("v_add_u32 v4, s3, v%d" % vL16)
    for f in range(6):
        for i in range(4):
            a.vwait("R%d_%d" % (f, i))
            for d in range(4):
                x = R(i, f) + d
                if i == 0:
                    a("v_lshlrev_b32 v%d, 16, v%d" % (AC(f) + 2 * d, x))
                    a("v_and_b32 v%d, 0xffff0000, v%d" % (AC(f) + 2 * d + 1, x))
                else:
                    a("v_lshlrev_b32 v%d, 16, v%d" % (vT[0], x))
                    a("v_and_b32 v%d, 0xffff0000, v%d" % (vT[1], x))
                    a("v_add_f32 v%d, v%d, v%d" % (AC(f) + 2 * d, AC(f) + 2 * d, vT[0]))
                    a("v_add_f32 v%d, v%d, v%d" % (AC(f) + 2 * d + 1, AC(f) + 2 * d + 1, vT[1]))
        for ab in range(2):
            a.lds("ds_write_b128 v4, %s offset:%d" % (vr(AC(f) + 4 * ab), (2 * f + ab) * 1024), "fw")
    a.lwait_all()
    a("s_barrier")
    a("s_mul_i32 s3, s%d, 3072" % sW)
    a("v_add_u32 v4, s3, v%d" % vL16)
    for i in range(3):
        for ww in range(4):
            a.lds("ds_read_b128 %s, v4 offset:%d" % (vr(64 + (i * 4 + ww) * 4), ww * 12288 + i * 1024), "fr%d" % i)
    a("v_and_b32 v5, 15, v1")
    a("v_lshrrev_b32 v6, 4, v1")
    a("v_lshlrev_b32 v6, 3, v6")
    a("v_lshl_add_u32 v5, v5, 10, v6")
    a("s_mul_i32 s%d, s%d, %d" % (sPart, sB, 96 * 1024))
    a("s_lshl_b32 s3, s%d, 6" % sHP)
    a("s_add_u32 s%d, s%d, s3" % (sPart, sPart))
    for i in range(3):
        a("s_mul_i32 s3, s%d, 3" % sW)
        a("s_add_u32 s3, s3, %d" % i)
        a("s_lshr_b32 s%d, s3, 1" % sTmp)
        a("s_lshl_b32 s%d, s%d, 14" % (sTmp, sTmp))
        a("s_and_b32 s3, s3, 1")
        a("s_lshl_b32 s3, s3, 5")
        a("s_add_u32 s%d, s%d, s3" % (sTmp, sTmp))
        a("s_add_u32 s%d, s%d, s%d" % (sTmp, sTmp, sPart))
        a.lwait("fr%d" % i)
        b = 64 + i * 16
        for j in range(4):
            a("v_add_f32 v%d, v%d, v%d" % (b + j, b + j, b + 4 + j))
            a("v_add_f32 v%d, v%d, v%d" % (b + 8 + j, b + 8 + j, b + 12 + j))
        for j in range(4):
            a("v_add_f32 v%d, v%d, v%d" % (b + j, b + j, b + 8 + j))
        a("v_cvt_pk_bf16_f32 v%d, v%d, v%d" % (b, b, b + 1))
        a("v_cvt_pk_bf16_f32 v%d, v%d, v%d" % (b + 1, b + 2, b + 3))
        a("buffer_store_dwordx2 %s, v5, s[%d:%d], s%d offen" % (vr(b, 2), SOUT, SOUT + 3, sTmp))
    if ST:
        a("s_waitcnt vmcnt(0)")
        stamp(10)
        a("s_cmp_eq_u32 s%d, 0" % sW)
        a("s_cbranch_scc0 L_st")
        a("s_mul_i32 s3, s2, %d" % (NSTAMP * 8))
        a("s_add_u32 s3, s3, 0x%x" % STAMPB)
        a("v_mov_b32 v2, 0")
        a("v_cmp_eq_u32 vcc, 0, v1")
        a("s_and_saveexec_b64 s[72:73], vcc")
        for i in range(11):
            a("v_mov_b32 v4, s%d" % (76 + 2 * i))
            a("v_mov_b32 v5, s%d" % (77 + 2 * i))
            a("buffer_store_dwordx2 v[4:5], v2, s[%d:%d], s3 offen offset:%d" % (SWS, SWS + 3, i * 8))
            a("s_waitcnt vmcnt(0)")
        a("s_mov_b64 exec, s[72:73]")
        a.lab("L_st")
    a("s_endpgm")
    for uid, buf in rare_blocks:
        rare(uid, buf)
    a.lab("L_end")
    a("s_endpgm")
    return a

def build(opts, verbose=False):
    k = gen(dict(opts))
    txt = header(["grid=(256,1,1) block=(256,1,1) lds=163840"], opts.get('comment', ""))
    lines, n = hazard.fix(k.lines, verbose, "g")
    errs = hazard.check_counters(lines, "g")
    for e in errs[:20]: print("ERR", e)
    if verbose: print("nops inserted:", n, "lines:", len(lines))
    txt += "\n".join(lines) + "\n"
    e = hazard.lint_srd(txt)
    assert not e, e
    txt += descriptor(KNAME, 512, 100, 256)
    return txt

if __name__ == "__main__":
    v = "-v" in sys.argv
    base = dict(touch=False, dspread=(2, 46), throttle=6)
    open("g5.s", "w").write(build(dict(base), v))
    open("g5_st.s", "w").write(build(dict(base, stamps=True)))
    open("g5_same.s", "w").write(build(dict(base, stamps=True, kvsame=True)))
    open("g5_old.s", "w").write(build(dict(base, late_st=False)))
```

```python
import sys, math, struct
from asmlib import *
import hazard

C_SCALE = math.log2(math.e) / math.sqrt(128.0)
def fbits(x): return struct.unpack("<I", struct.pack("<f", x))[0]
PBASE = 0x0
OBASE = 0x0
P2BASE = 0x1000000
FLAGB = 0x2000000
STAMPB = 0x1F000000
NSTAMP = 12

class G(Asm):
    def __init__(self):
        super().__init__()
        self.vm = []; self.lg = []
    def vmem(self, s, tag):
        self(s); self.vm.append(tag)
    def vcount(self, tag):
        idx = max(i for i, t in enumerate(self.vm) if t == tag)
        n = len(self.vm) - 1 - idx
        self.vm = self.vm[idx + 1:]
        assert n <= 63
        return n
    def vwait(self, tag):
        if tag not in self.vm: return
        self("s_waitcnt vmcnt(%d)" % self.vcount(tag))
    def lds(self, s, tag):
        self(s); self.lg.append(tag)
        assert len(self.lg) <= 15, ("lds overflow", s)
    def lwait(self, tag):
        if tag not in self.lg: return
        idx = max(i for i, t in enumerate(self.lg) if t == tag)
        n = len(self.lg) - 1 - idx
        self.lg = self.lg[idx + 1:]
        self("s_waitcnt lgkmcnt(%d)" % n)
    def lwait_all(self):
        if self.lg:
            self("s_waitcnt lgkmcnt(0)"); self.lg = []

def run_gaps(n, mf, pre, fill):
    for g in range(n):
        for f in pre.get(g, []): f()
        mf[g]()
        for f in fill.get(g, []): f()
def spread(fill, items, g0, g1):
    n = len(items); m = g1 - g0
    for k, it in enumerate(items):
        g = g0 + (k * m) // n
        fill.setdefault(g, []).append(it)

def gen(opts):
    a = G()
    ST = opts.get('stamps')
    def cstamp(idx):
        a("s_memtime s[%d:%d]" % (76 + 2 * idx, 77 + 2 * idx))
    def stamp(idx, o=False):
        if not ST: return
        if opts.get('tdiag') and not o and idx not in (0, 10): return
        if (opts.get('odiag') or opts.get('q_stamps') or opts.get('s_stamps') or opts.get('qd') is not None) and not o and idx not in (0, 1, 10): return
        a("s_memrealtime s[%d:%d]" % (76 + 2 * idx, 77 + 2 * idx))
        a("s_waitcnt lgkmcnt(0)")
        a.lg = []
    NT = " nt" if opts.get('nt', True) else ""
    WNT = opts.get('wq_flags', ""); XNT = opts.get('x_flags', ""); WOF = opts.get('wo_flags', "")
    PST = opts.get('p_st', " sc1"); PLD = opts.get('p_ld', " sc1")
    ROT = opts.get('rot', True)
    T_LOG2 = opts.get('T', 8.0)
    vKd = [10, 11, 12, 13]; vVd = [14, 15]; vWd = 16; vXd = [17, 9]; aX = [7, 8]
    aK = [18, 19, 20, 21]; aV = list(range(22, 30)); aW = list(range(112, 120)); vWd2 = 33
    vMC = [34, 35, 36]; vT = list(range(37, 46))
    vWo = [30, 31]; vL16 = 32
    Sb = lambda buf, kt, qt: 52 + 24 * buf + (kt * 3 + qt) * 4
    P = lambda qt: 100 + 4 * qt
    O = lambda dt, qt: 152 + (dt * 3 + qt) * 4
    Xf = lambda ks, qt: 52 + (ks * 3 + qt) * 4
    Qa = lambda s, qt: (s * 3 + qt) * 4
    La = lambda qt: 48 + 4 * qt
    ONES = 60
    Kf = lambda s, kt: 64 + (s * 2 + kt) * 4
    Vf = lambda dt: 96 + 4 * dt
    Wf = lambda buf, dt: 128 + buf * 32 + dt * 4
    vr = lambda b, n=4: "v[%d:%d]" % (b, b + n - 1)
    ar = lambda b, n=4: "a[%d:%d]" % (b, b + n - 1)
    sW = 40; sH0 = 41; sB = 42; sQH = 43; sKV = 44; sCur = 45; sPrev = 46; sDK = 47; sWoff = 48; sT = 49
    sXo = 50; sP = 51; sC0 = 52; sWq = 53; sC = 54; sTmp = 55; sTmp2 = 56; sDV = 57
    sHP = 58; sW8k = 59; sW3k = 60; sCh = 61; sChX = 62; sWoB = 63; sR0 = 64; sPart = 65; sN = 66
    sNxt = 68; sCB = 69; sM0 = 70
    SX, SK, SV, SWQ, SWS, SWO, SOUT, SDBG = 20, 24, 28, 32, 36, 4, 8, 12

    a(kernel_begin(KNAME))
    a("s_cmp_ge_u32 s2, 256")
    a("s_cbranch_scc1 L_end")
    stamp(0)
    a("s_load_dwordx16 s[52:67], s[0:1], 0")
    a("v_lshrrev_b32 v2, 6, v0")
    a("v_and_b32 v1, 63, v0")
    a("v_readfirstlane_b32 s%d, v2" % sW)
    a("v_lshrrev_b32 v2, 4, v1")
    a("v_and_b32 v3, 15, v1")
    for kk, reg in ((0, vWd), (1, vWd2)):
        a("v_add_u32 v4, %d, v2" % (4 * kk))
        a("v_lshlrev_b32 v4, 1, v4")
        a("v_xor_b32 v4, v3, v4")
        a("v_lshlrev_b32 v4, 4, v4")
        a("v_lshl_add_u32 v%d, v2, 13, v4" % reg)
    a("v_and_b32 v5, 7, v1")
    a("v_lshrrev_b32 v6, 3, v1")
    for jp in range(2):
        a("s_add_u32 s3, s%d, %d" % (sW, jp))
        a("s_and_b32 s3, s3, 1")
        a("s_lshl_b32 s3, s3, 2")
        a("v_add_u32 v4, s3, v2")
        a("v_xor_b32 v4, v5, v4")
        a("v_lshlrev_b32 v4, 4, v4")
        a("v_lshl_add_u32 v%d, v6, 10, v4" % vXd[jp])
    a("s_and_b32 s16, s2, 7")
    a("s_lshr_b32 s17, s2, 3")
    a("s_and_b32 s18, s16, 3")
    a("s_lshl_b32 s18, s18, 2")
    a("s_and_b32 s3, s17, 3")
    a("s_add_u32 s18, s18, s3")
    a("s_lshl_b32 s%d, s18, 1" % sH0)
    a("s_lshr_b32 s%d, s16, 2" % sB)
    a("s_lshl_b32 s%d, s%d, 3" % (sB, sB))
    a("s_lshr_b32 s17, s17, 2")
    a("s_add_u32 s%d, s%d, s17" % (sB, sB))
    if ROT:
        if opts.get('rot2'):
            a("s_add_u32 s3, s3, s17")
            a("s_and_b32 s3, s3, 3")
            a("s_lshl_b32 s19, s3, 1")
        else:
            a("s_lshl_b32 s3, s3, 1")
            a("s_add_u32 s3, s3, s17")
            a("s_and_b32 s19, s3, 7")
        a("s_and_b32 s17, s17, 3")
    else:
        a("s_mov_b32 s19, 0")
        a("s_mov_b32 s17, 0")
    a("s_lshr_b32 s%d, s%d, 1" % (sP, sW))
    a("s_and_b32 s%d, s%d, 1" % (sQH, sW))
    a("s_mul_i32 s%d, s%d, 96" % (sXo, sB))
    a("s_mul_i32 s3, s%d, 24" % sW)
    a("s_add_u32 s%d, s%d, s3" % (sXo, sXo))
    a("s_lshl_b32 s%d, s%d, 10" % (sXo, sXo))
    a("s_waitcnt lgkmcnt(0)")
    if opts.get('s_stamps'): stamp(2, True)
    srd(a, SWQ, 58, 0x400000)
    srd(a, SX, 52, 16 * 96 * 512 * 2)
    srd(a, SK, 54, 0x8000000)
    srd(a, SV, 56, 0x8000000)
    srd(a, SWO, 60, 0x400000)
    srd(a, SOUT, 62, 16 * 96 * 512 * 2)
    srd(a, SDBG, 64, 256)
    srd(a, SWS, 66, 0x20000000)
    a("s_mov_b32 s%d, s18" % sHP)
    a("s_mov_b32 s%d, s19" % sC0)
    a("s_mov_b32 s%d, s17" % sR0)
    a("s_lshl_b32 s%d, s%d, 18" % (sWq, sQH))
    a("s_add_u32 s3, s%d, s%d" % (sH0, sP))
    a("s_lshl_b32 s3, s3, 8")
    a("s_add_u32 s%d, s%d, s3" % (sWq, sWq))
    a("s_lshl_b32 s%d, s%d, 13" % (sW8k, sW))
    a("s_mul_i32 s%d, s%d, 3072" % (sW3k, sW))

    CB = [28672, 73728, 118784]
    QM2 = opts.get('qmap2', False)
    def cbase(i):
        if QM2: return CB[[0, 1, 2, 0, 1, 2, 1, 2][i]]
        return CB[(i + 1) % 3]
    def C_items(i):
        items = []
        def head():
            a("s_add_u32 s%d, s%d, %d" % (sCh, sC0, i))
            a("s_and_b32 s%d, s%d, 7" % (sCh, sCh))
            a("s_lshl_b32 s%d, s%d, 7" % (sChX, sCh))
            a("s_add_u32 s%d, s%d, s%d" % (sChX, sChX, sXo))
            a("s_lshl_b32 s%d, s%d, 19" % (sCh, sCh))
            a("s_add_u32 s%d, s%d, s%d" % (sCh, sCh, sWq))
        def wq(jj):
            if jj == 0: head()
            a("s_add_u32 m0, s%d, %d" % (sW8k, cbase(i) + jj * 1024))
            a("s_add_u32 s%d, s%d, %d" % (sTmp, sCh, 4 * jj * 8192))
            a.vmem("buffer_load_dwordx4 v%d, s[%d:%d], s%d offen%s lds" % (vWd2 if (jj >> 1) & 1 else vWd, SWQ, SWQ + 3, sTmp, WNT), "C%d" % i)
        def xx(j):
            a("s_add_u32 m0, s%d, %d" % (sW3k, cbase(i) + 32768 + j * 1024))
            a("s_add_u32 s%d, s%d, %d" % (sTmp, sChX, 8 * j * 1024))
            a.vmem("buffer_load_dwordx4 v%d, s[%d:%d], s%d offen%s lds" % (vXd[j & 1], SX, SX + 3, sTmp, XNT), "C%d" % i)
        for jj in range(8): items.append(lambda jj=jj: wq(jj))
        for j in range(3): items.append(lambda j=j: xx(j))
        return items
    for it in C_items(0): it()
    if opts.get('s_stamps'): stamp(3, True)
    for it in C_items(1): it()
    if opts.get('s_stamps'): stamp(4, True)
    if opts.get('tlb', True):
        a("v_mov_b32 v5, 0")
        a("s_lshl_b32 s3, s%d, 5" % sB)
        a("s_add_u32 s3, s3, s%d" % sH0)
        a("s_add_u32 s3, s3, s%d" % sP)
        a("s_lshl_b32 s3, s3, 18")
        a.vmem("buffer_load_dword v46, v5, s[%d:%d], s3 offen nt" % (SV, SV + 3), "T")
        a("s_lshl_b32 s3, s%d, 17" % sH0)
        a.vmem("buffer_load_dword v47, v5, s[%d:%d], s3 offen" % (SWO, SWO + 3), "T")
        a("s_lshl_b32 s3, s%d, 4" % sB)
        a("s_add_u32 s3, s3, s%d" % sHP)
        a("s_mul_i32 s3, s3, %d" % (96 * 1024))
        a.vmem("buffer_load_dword v48, v5, s[%d:%d], s3 offen nt" % (SWS, SWS + 3), "T")

    for jj in range(4):
        a("v_add_u32 v4, %d, v2" % (4 * jj))
        a("v_xor_b32 v4, v3, v4")
        a("v_lshlrev_b32 v4, 4, v4")
        a("v_lshl_add_u32 v%d, v2, 8, v4" % vKd[jj])
    for jp in range(2):
        a("v_add_u32 v4, %d, v2" % (4 * jp))
        a("v_lshlrev_b32 v4, 1, v4")
        a("v_xor_b32 v4, v3, v4")
        a("v_lshlrev_b32 v4, 4, v4")
        a("v_lshl_add_u32 v%d, v2, 8, v4" % vVd[jp])
    a("s_lshl_b32 s%d, s%d, 13" % (sWoff, sP))
    a("s_lshl_b32 s3, s%d, 12" % sQH)
    a("s_add_u32 s%d, s%d, s3" % (sWoff, sWoff))
    a("s_lshl_b32 s%d, s%d, 5" % (sKV, sB))
    a("s_add_u32 s%d, s%d, s%d" % (sKV, sKV, sH0))
    a("s_add_u32 s%d, s%d, s%d" % (sKV, sKV, sP))
    a("s_lshl_b32 s%d, s%d, 18" % (sKV, sKV))
    a("s_add_u32 s%d, s%d, s3" % (sKV, sKV))

    def KV_items(tag, slot_sgpr=None, slot_const=None, which="KV", goff=None):
        items = []
        def mk(n, first, last):
            def f():
                isv = n >= 4; jj = n & 3
                mixed = opts.get('_mixed')
                if slot_sgpr is not None:
                    if first: a("s_add_u32 s%d, s%d, s%d" % (sM0, slot_sgpr, sWoff))
                    if jj == 0 or mixed: a("s_add_u32 m0, s%d, %d" % (sM0, 16384 if isv else 0))
                else:
                    if jj == 0 or mixed: a("s_add_u32 m0, s%d, %d" % (sWoff, slot_const + (16384 if isv else 0)))
                so = sKV
                if goff:
                    a("s_add_u32 s%d, s%d, %d" % (sTmp, sKV, goff)); so = sTmp
                elif jj == 0 or mixed: a("s_nop 0")
                if isv:
                    a.vmem("buffer_load_dwordx4 v%d, s[%d:%d], s%d offen offset:%d%s lds" % (vVd[jj & 1], SV, SV + 3, so, jj * 1024, NT), tag)
                else:
                    a.vmem("buffer_load_dwordx4 v%d, s[%d:%d], s%d offen offset:%d%s lds" % (vKd[jj], SK, SK + 3, so, jj * 1024, NT), tag)
                if last and goff is None:
                    a("s_add_u32 s%d, s%d, %d" % (sKV, sKV, 0 if opts.get('kvsame') else 8192))
            return f
        ns = [n for n in range(8) if (n < 4 and "K" in which) or (n >= 4 and "V" in which)]
        return [mk(n, k == 0, k == len(ns) - 1) for k, n in enumerate(ns)]

    a("v_lshrrev_b32 v5, 2, v3")
    a("v_and_b32 v6, 3, v1")
    a("s_lshl_b32 s3, s%d, 13" % sP)
    for s in range(4):
        a("v_add_u32 v4, %d, v2" % (4 * s))
        a("v_xor_b32 v4, v4, v3")
        a("v_lshlrev_b32 v4, 4, v4")
        a("v_lshl_add_u32 v4, v3, 8, v4")
        a("v_add_u32 v%d, s3, v4" % aK[s])
    a("v_lshl_add_u32 v4, v2, 2, v5")
    a("v_and_b32 v0, 7, v4")
    a("v_lshlrev_b32 v0, 5, v0")
    a("v_lshl_add_u32 v0, v4, 8, v0")
    a("v_lshl_add_u32 v0, v6, 3, v0")
    a("s_add_u32 s%d, s3, 16384" % sTmp)
    a("v_add_u32 v%d, s%d, v0" % (aV[0], sTmp))
    a("s_lshl_b32 s3, s%d, 14" % sP)
    for dt in range(1, 8):
        a("v_xor_b32 v%d, %d, v%d" % (aV[dt], dt << 5, aV[0]))
    a("v_and_b32 v7, 1, v2")
    a("v_lshl_add_u32 v7, v7, 2, v5")
    a("v_lshl_add_u32 v4, v2, 3, v5")
    a("v_lshlrev_b32 v4, 8, v4")
    a("v_lshl_add_u32 v4, v7, 5, v4")
    a("v_lshl_add_u32 v4, v6, 3, v4")
    a("v_add_u32 v%d, s3, v4" % aW[0])
    for dt in range(1, 8):
        a("v_xor_b32 v%d, %d, v%d" % (aW[dt], dt << 5, aW[0]))
    a("v_lshrrev_b32 v4, 1, v3")
    a("s_mul_i32 s3, s%d, 6144" % sQH)
    a("s_add_u32 s3, s3, 32768")
    for ks in range(2):
        a("v_add_u32 v5, %d, v2" % (4 * ks))
        a("v_xor_b32 v5, v5, v4")
        a("v_lshlrev_b32 v5, 4, v5")
        a("v_lshl_add_u32 v5, v3, 7, v5")
        a("v_add_u32 v%d, s3, v5" % aX[ks])
    a("s_mov_b32 s%d, 0x%x" % (sC, fbits(C_SCALE)))
    a("v_mov_b32 v4, 0x3f803f80")
    for i in range(4):
        a("v_accvgpr_write_b32 a%d, v4" % (ONES + i))
    for i in range(12):
        a("v_accvgpr_write_b32 a%d, 0" % (48 + i))
    a("s_or_b32 s3, s2, s%d" % sW)
    a("s_cmp_eq_u32 s3, 0")
    a("s_cbranch_scc0 L_nononce")
    a("s_memrealtime s[%d:%d]" % (sN, sN + 1))
    a("s_waitcnt lgkmcnt(0)")
    a("s_or_b32 s%d, s%d, 1" % (sN, sN))
    a("v_mov_b32 v4, s%d" % sN)
    a("v_mov_b32 v5, s%d" % (sN + 1))
    a("v_mov_b32 v6, 0")
    a("buffer_store_dwordx2 v[4:5], v6, s[%d:%d], 0 offen sc1" % (SDBG, SDBG + 3))
    a.lab("L_nononce")

    tW = list(range(120, 128)); tX = [vT[4], vT[5]]
    opts['_mixed'] = True
    step_off = 0 if opts.get('kvsame') else 8192
    def touch_items():
        TF = opts.get('touch_flags', "")
        def prep():
            a("v_lshlrev_b32 v5, 7, v1")
            a("s_and_b32 s%d, s%d, 0xfffc0000" % (sTmp2, sKV))
            a("s_add_u32 s3, s%d, 1" % sQH)
            a("s_lshl_b32 s3, s3, 13")
            a("s_add_u32 s%d, s%d, s3" % (sTmp2, sTmp2))
        def tk():
            prep()
            a.vmem("buffer_load_dword v46, v5, s[%d:%d], s%d offen%s" % (SK, SK + 3, sTmp2, TF), "T")
        def tv():
            prep()
            a.vmem("buffer_load_dword v47, v5, s[%d:%d], s%d offen%s" % (SV, SV + 3, sTmp2, TF), "T")
        return [tk, tv]
    def x_read(i, ks, qt): a.lds("ds_read_b128 %s, v%d offset:%d" % (vr(Xf(ks, qt)), tX[ks], qt * 2048), "x%d" % ks)
    def w_read(tl, dt, u):
        a.lds("ds_read_b64_tr_b16 %s, v%d offset:%d" % (ar(Wf(tl, dt) + 2 * u, 2), tW[dt], tl * 8192 + u * 1024), "w%d_%d" % (tl, dt))
    W = lambda tl, dts: [(lambda tl=tl, dt=dt, u=u: w_read(tl, dt, u)) for dt in dts for u in range(2)]
    def q_addr(i):
        return [(lambda sp=sp: a("v_add_u32 v%d, %d, v%d" % (tW[sp], cbase(i), aW[sp]))) for sp in range(8)] + \
               [(lambda ks=ks: a("v_add_u32 v%d, %d, v%d" % (tX[ks], cbase(i), aX[ks]))) for ks in range(2)]
    def q_first(i):
        return [(lambda qt=qt: x_read(i, 0, qt)) for qt in range(3)] + W(0, range(0, 4))
    win = {}
    for i in range(0, 3 if QM2 else 5): win[i] = C_items(i + 3) if not opts.get('q_nodma') else []
    win[5] = KV_items("KV0", slot_const=0, which="V", goff=None) + KV_items("KV1", slot_const=32768) if False else None
    k0 = KV_items("K0", slot_const=0, which="K", goff=0)
    win[5] = KV_items("V0", slot_const=0, which="V") + KV_items("KV1", slot_const=32768)
    if QM2:
        kvall = win[5]; nb_ = opts.get('qm2_burst', 12)
        win[3] = kvall[:nb_]; win[4] = C_items(6); win[5] = C_items(7) + kvall[nb_:]
    win[6] = KV_items("KV2", slot_const=65536)
    win[7] = KV_items("KV3", slot_const=98304)
    TOUCH = opts.get('touch', True)
    pending = C_items(2) + k0 + (touch_items() if TOUCH else [])
    if opts.get('s_stamps'): stamp(5, True)
    a.vwait("C0")
    stamp(1)
    a("s_barrier")
    for f in q_addr(0) + q_first(0): f()
    LB = 36
    for i in range(8):
        mf = []; pre = {}; fill = {}
        for tl in range(2):
            for dt in range(8):
                for qt in range(3):
                    c = "0" if (i == 0 and tl == 0) else vr(O(dt, qt))
                    mf.append(lambda tl=tl, dt=dt, qt=qt, c=c: a("v_mfma_f32_16x16x32_bf16 %s, %s, %s, %s" % (vr(O(dt, qt)), ar(Wf(tl, dt)), vr(Xf(tl, qt)), c)))
        for tl in range(2):
            for dt in (1, 3, 5, 7):
                g = tl * 24 + (dt - 1) * 3
                pre.setdefault(g, []).append(lambda tl=tl, dt=dt: a.lwait("w%d_%d" % (tl, dt)))
        spread(fill, W(0, range(4, 8)), 0, 6)
        spread(fill, [lambda qt=qt, i=i: x_read(i, 1, qt) for qt in range(3)] + W(1, range(0, 4)), 12, 20)
        spread(fill, W(1, range(4, 8)), 24, 30)
        qd = opts.get('qd')
        def late(i=i):
            a.lwait("w1_7")
            if qd == i: stamp(4, True)
            if i < 7: a.vwait("C%d" % (i + 1))
            if qd == i: stamp(5, True)
            if opts.get('q_stamps'): stamp(2 + i, True)
            if i in (2, 6): stamp({2: 2, 6: 3}[i])
            a("s_barrier")
            if qd == i: stamp(6, True)
        if qd == i:
            pre.setdefault(0, []).insert(0, lambda: stamp(1, True))
            pre.setdefault(12, []).insert(0, lambda: stamp(2, True))
            pre.setdefault(24, []).insert(0, lambda: stamp(3, True))
        if qd == i - 1:
            pre.setdefault(0, []).insert(0, lambda: stamp(7, True))
        pre.setdefault(LB, []).append(late)
        w = win.get(i, [])
        nfirst = (len(w) * (48 - LB)) // 46
        if i == 7: nfirst = len(w)
        if QM2 and i in (4, 5): nfirst = min(len(w), opts.get('qm2_first', 6))
        if pending: spread(fill, pending, 0, (opts.get('qm2_end', 14) if (QM2 and i in (5, 6)) else LB - 2))
        if nfirst: spread(fill, w[:nfirst], LB + 1, 48)
        pending = w[nfirst:]
        if i < 7:
            spread(fill, q_addr(i + 1), LB, LB + 3)
            spread(fill, q_first(i + 1), LB + 3, 48)
        run_gaps(48, mf, pre, fill)
    assert not pending and not a.lg, (pending, a.lg)
    opts['_mixed'] = False
    k = 0
    cvt_sets = [[112 + 4 * j + i for i in range(4)] for j in range(4)]
    work = [(sp, qt) for sp in range(4) for qt in range(3)]
    def q_cvt(n):
        sp, qt = work[n]; t = cvt_sets[n & 3]
        oa, ob = O(2 * sp, qt), O(2 * sp + 1, qt)
        a("v_cvt_pk_bf16_f32 v%d, v%d, v%d" % (t[0], oa, oa + 1))
        a("v_cvt_pk_bf16_f32 v%d, v%d, v%d" % (t[1], oa + 2, oa + 3))
        a("v_cvt_pk_bf16_f32 v%d, v%d, v%d" % (t[2], ob, ob + 1))
        a("v_cvt_pk_bf16_f32 v%d, v%d, v%d" % (t[3], ob + 2, ob + 3))
    def q_s32(n):
        t = cvt_sets[n & 3]
        a("v_permlane32_swap_b32 v%d, v%d" % (t[0], t[2]))
        a("v_permlane32_swap_b32 v%d, v%d" % (t[1], t[3]))
    def q_s16(n):
        t = cvt_sets[n & 3]
        a("v_permlane16_swap_b32 v%d, v%d" % (t[0], t[2]))
        a("v_permlane16_swap_b32 v%d, v%d" % (t[1], t[3]))
    def q_wr(n):
        sp, qt = work[n]; t = cvt_sets[n & 3]
        for i in range(4):
            a("v_accvgpr_write_b32 a%d, v%d" % (Qa(sp, qt) + i, t[i]))
    for n in range(12 + 3):
        if n < 12: q_cvt(n)
        if 0 <= n - 1 < 12: q_s32(n - 1)
        if 0 <= n - 2 < 12: q_s16(n - 2)
        if 0 <= n - 3 < 12: q_wr(n - 3)
    for jp in range(2):
        a("v_add_u32 v4, %d, v2" % (4 * jp))
        a("v_lshlrev_b32 v4, 1, v4")
        a("v_xor_b32 v4, v3, v4")
        a("v_lshlrev_b32 v4, 4, v4")
        a("v_lshl_add_u32 v%d, v2, 10, v4" % vWo[jp])
    a("v_lshlrev_b32 v%d, 4, v1" % vL16)
    a("s_lshl_b32 s%d, s%d, 17" % (sWoB, sH0))
    a("s_lshl_b32 s3, s%d, 15" % sW)
    a("s_add_u32 s%d, s%d, s3" % (sWoB, sWoB))
    stamp(4)

    def k_read(s, kt): a.lds("ds_read_b128 %s, v%d offset:%d" % (ar(Kf(s, kt)), aK[s], kt * 4096), "k%d" % s)
    def v_read(dt, u): a.lds("ds_read_b64_tr_b16 %s, v%d offset:%d" % (ar(Vf(dt) + 2 * u, 2), aV[dt], u * 4096), "v%d" % dt)
    def qk_mfma(buf, m):
        s, kt, qt = m // 6, (m % 6) // 3, m % 3
        c = "0" if s == 0 else vr(Sb(buf, kt, qt))
        a("v_mfma_f32_16x16x32_bf16 %s, %s, %s, %s" % (vr(Sb(buf, kt, qt)), ar(Kf(s, kt)), ar(Qa(s, qt)), c))

    for s in range(4):
        for kt in range(2): k_read(s, kt)
    for i in range(96):
        a("v_mov_b32 v%d, 0" % (152 + i))
    for m in range(24):
        if m % 6 == 0: a.lwait("k%d" % (m // 6))
        qk_mfma(0, m)
    for s in range(4):
        a("v_add_u32 v%d, 32768, v%d" % (aK[s], aK[s]))
    for qt in range(3):
        s0, s1 = Sb(0, 0, qt), Sb(0, 1, qt)
        mx, t = vT[0], vT[1]
        a("v_max3_f32 v%d, v%d, v%d, v%d" % (mx, s0, s0 + 1, s0 + 2))
        a("v_max3_f32 v%d, v%d, v%d, v%d" % (t, s0 + 3, s1, s1 + 1))
        a("v_max3_f32 v%d, v%d, v%d, v%d" % (mx, mx, s1 + 2, s1 + 3))
        a("v_max_f32 v%d, v%d, v%d" % (mx, mx, t))
        a("v_mov_b32 v%d, v%d" % (t, mx))
        a("v_permlane16_swap_b32 v%d, v%d" % (t, mx))
        a("v_max_f32 v%d, v%d, v%d" % (mx, mx, t))
        a("v_mov_b32 v%d, v%d" % (t, mx))
        a("v_permlane32_swap_b32 v%d, v%d" % (t, mx))
        a("v_max_f32 v%d, v%d, v%d" % (mx, mx, t))
        a("v_mul_f32 v%d, s%d, v%d" % (vMC[qt], sC, mx))
    a("s_mov_b32 s%d, 0" % sCur)
    a("s_mov_b32 s%d, 32768" % sNxt)
    a("s_mov_b32 s%d, 131072" % sPrev)
    a("s_mov_b32 s%d, 0" % sT)
    assert a.vm[-16:] == ["KV2"] * 8 + ["KV3"] * 8, a.vm

    rare_blocks = []
    def step(vmn, dma_items, uid, buf, qk=True, throttle_ok=True):
        a("s_waitcnt vmcnt(%d)" % vmn)
        a("s_barrier")
        if qk:
            for s in range(4):
                for kt in range(2): k_read(s, kt)
        V = lambda dts: [(lambda dt=dt, u=u: v_read(dt, u)) for dt in dts for u in range(2)]
        for f in V(range(0, 3)): f()
        def fma(qt, j):
            r = Sb(buf, j >> 2, qt) + (j & 3)
            a("v_fma_f32 v%d, v%d, s%d, -v%d" % (r, r, sC, vMC[qt]))
        def ex(qt, j):
            r = Sb(buf, j >> 2, qt) + (j & 3)
            a("v_exp_f32 v%d, v%d" % (r, r))
        def cv(qt, j):
            kt, h = j >> 1, j & 1
            s0 = Sb(buf, kt, qt) + 2 * h
            a("v_cvt_pk_bf16_f32 v%d, v%d, v%d" % (P(qt) + 2 * kt + h, s0, s0 + 1))
        FM = lambda qt: [(lambda j=j: fma(qt, j)) for j in range(8)]
        EX = lambda qt: [(lambda j=j: ex(qt, j)) for j in range(8)]
        CV = lambda qt: [(lambda j=j: cv(qt, j)) for j in range(4)]
        allr = [Sb(buf, j >> 2, qt) + (j & 3) for qt in range(3) for j in range(8)]
        MX = []
        t = vT[0:4]
        for k in range(4):
            r = allr[6 * k:6 * k + 6]
            MX.append(lambda k=k, r=r: a("v_max3_f32 v%d, v%d, v%d, v%d" % (t[k], r[0], r[1], r[2])))
            MX.append(lambda k=k, r=r: a("v_max3_f32 v%d, v%d, v%d, v%d" % (t[k], t[k], r[3], r[4])))
        r5 = [allr[6 * k + 5] for k in range(4)]
        MX.append(lambda: a("v_max3_f32 v%d, v%d, v%d, v%d" % (t[0], t[0], t[1], r5[0])))
        MX.append(lambda: a("v_max3_f32 v%d, v%d, v%d, v%d" % (t[2], t[2], t[3], r5[1])))
        MX.append(lambda: a("v_max3_f32 v%d, v%d, v%d, v%d" % (t[0], t[0], r5[2], r5[3])))
        MX.append(lambda: a("v_max_f32 v%d, v%d, v%d" % (t[0], t[0], t[2])))
        def chk():
            a("v_cmp_lt_f32 vcc, 0x%x, v%d" % (fbits(T_LOG2), t[0]))
            a("s_cbranch_vccnz L_rare_%s" % uid)
            a.lab("L_cont_%s" % uid)
        rare_blocks.append((uid, buf))
        def pv(g):
            qt, k = g // 9, g % 9
            if k == 0:
                a("v_mfma_f32_16x16x32_bf16 %s, %s, %s, %s" % (ar(La(qt)), ar(ONES), vr(P(qt)), ar(La(qt))))
            else:
                dt = k - 1
                a("v_mfma_f32_16x16x32_bf16 %s, %s, %s, %s" % (vr(O(dt, qt)), ar(Vf(dt)), vr(P(qt)), vr(O(dt, qt))))
        def slots():
            a("s_mov_b32 s%d, s%d" % (sPrev, sCur))
            a("s_mov_b32 s%d, s%d" % (sCur, sNxt))
            a("s_add_u32 s%d, s%d, 32768" % (sNxt, sNxt))
            a("s_cmp_eq_u32 s%d, 163840" % sNxt)
            a("s_cselect_b32 s%d, 0, s%d" % (sNxt, sNxt))
            a("s_sub_u32 s%d, s%d, s%d" % (sDK, sNxt, sCur))
            a("s_sub_u32 s%d, s%d, s%d" % (sDV, sCur, sPrev))
        ADDR = [(lambda r=r: a("v_add_u32 v%d, s%d, v%d" % (r, sDK, r))) for r in aK] + \
               [(lambda r=r: a("v_add_u32 v%d, s%d, v%d" % (r, sDV, r))) for r in aV]
        if qk:
            for f in FM(0): f()
            mf = [(lambda m=m: qk_mfma(buf ^ 1, m)) for m in range(24)] + [(lambda g=g: pv(g)) for g in range(27)]
            pre = {0: [lambda: a.lwait("k0")], 6: [lambda: a.lwait("k1")], 12: [lambda: a.lwait("k2")], 18: [lambda: a.lwait("k3")],
                   25: [lambda: a.lwait("v3")], 29: [lambda: a.lwait("v7")]}
            fill = {}
            spread(fill, FM(1) + FM(2), 0, 6)
            spread(fill, MX, 6, 10)
            spread(fill, V(range(3, 5)), 6, 10)
            fill.setdefault(9, []).append(chk)
            spread(fill, EX(0) + CV(0) + EX(1), 10, 18)
            spread(fill, V(range(5, 6)), 12, 14)
            spread(fill, V(range(6, 7)), 18, 20)
            spread(fill, CV(1) + EX(2), 18, 24)
            fill.setdefault(21, []).append(lambda: a.lwait("v0"))
            spread(fill, V(range(7, 8)), 21, 23)
            spread(fill, CV(2), 24, 27)
            d0, d1 = opts.get('dspread', (26, 42))
            TH = opts.get('throttle')
            if TH and throttle_ok:
                dma_items = [(lambda f=f: (a("s_waitcnt vmcnt(%d)" % (TH - 1)), f())) for f in dma_items]
            spread(fill, dma_items, d0, d1)
            fill.setdefault(max(41, d1 - 1), []).append(slots)
            spread(fill, ADDR, max(42, d1), 51) if d1 < 50 else spread(fill, ADDR, 50, 51)
            run_gaps(51, mf, pre, fill)
        else:
            for f in V(range(3, 7)): f()
            for f in FM(0) + FM(1) + FM(2) + MX: f()
            chk()
            a.lwait("v3")
            for f in V(range(7, 8)): f()
            for f in EX(0) + CV(0): f()
            mf = [(lambda g=g: pv(g)) for g in range(27)]
            pre = {1: [lambda: a.lwait("v3")], 5: [lambda: a.lwait("v7")]}
            fill = {}
            spread(fill, EX(1) + CV(1), 0, 8)
            spread(fill, EX(2) + CV(2), 9, 17)
            spread(fill, dma_items, 18, 26)
            run_gaps(27, mf, pre, fill)
        assert not a.lg, a.lg

    def rare(uid, buf):
        a.lab("L_rare_%s" % uid)
        for qt in range(3):
            s0, s1 = Sb(buf, 0, qt), Sb(buf, 1, qt)
            mx, t = vT[4], vT[5]
            a("v_max3_f32 v%d, v%d, v%d, v%d" % (mx, s0, s0 + 1, s0 + 2))
            a("v_max3_f32 v%d, v%d, v%d, v%d" % (t, s0 + 3, s1, s1 + 1))
            a("v_max3_f32 v%d, v%d, v%d, v%d" % (mx, mx, s1 + 2, s1 + 3))
            a("v_max3_f32 v%d, v%d, v%d, 0" % (mx, mx, t))
            a("v_mov_b32 v%d, v%d" % (t, mx))
            a("v_permlane16_swap_b32 v%d, v%d" % (t, mx))
            a("v_max_f32 v%d, v%d, v%d" % (mx, mx, t))
            a("v_mov_b32 v%d, v%d" % (t, mx))
            a("v_permlane32_swap_b32 v%d, v%d" % (t, mx))
            a("v_max_f32 v%d, v%d, v%d" % (mx, mx, t))
            a("v_add_f32 v%d, v%d, v%d" % (vMC[qt], vMC[qt], mx))
            for j in range(4):
                a("v_sub_f32 v%d, v%d, v%d" % (s0 + j, s0 + j, mx))
                a("v_sub_f32 v%d, v%d, v%d" % (s1 + j, s1 + j, mx))
            a("v_sub_f32 v%d, 0, v%d" % (t, mx))
            a("v_exp_f32 v%d, v%d" % (t, t))
            a("s_nop 0")
            for dt in range(8):
                for j in range(4):
                    a("v_mul_f32 v%d, v%d, v%d" % (O(dt, qt) + j, t, O(dt, qt) + j))
            for j in range(4):
                a("v_accvgpr_read_b32 v%d, a%d" % (mx, La(qt) + j))
                a("v_mul_f32 v%d, v%d, v%d" % (mx, t, mx))
                a("v_accvgpr_write_b32 a%d, v%d" % (La(qt) + j, mx))
        a("s_branch L_cont_%s" % uid)

    saved_vm = list(a.vm)
    a.lab("L_loop")
    step(16, KV_items("KVx", slot_sgpr=sPrev), "m0", 0)
    step(16, KV_items("KVx", slot_sgpr=sPrev), "m1", 1)
    a("s_add_u32 s%d, s%d, 2" % (sT, sT))
    a("s_cmp_lt_u32 s%d, 28" % sT)
    a("s_cbranch_scc1 L_loop")
    a.vm = ["KV29"] * 8 + ["KV30"] * 8 + ["KV31"] * 8

    USLOT = [65536, 98304, 131072]
    sL = sR0
    sBi = 71
    def pair_of(j):
        m = j >> 1
        if m == 0:
            a("s_mov_b32 s%d, s%d" % (sTmp2, sL))
        else:
            a("s_add_u32 s%d, s%d, %d" % (sTmp2, sBi, m - 1))
            a("s_cmp_ge_u32 s%d, 3" % sTmp2)
            a("s_cselect_b32 s3, 3, 0")
            a("s_sub_u32 s%d, s%d, s3" % (sTmp2, sTmp2))
            a("s_add_u32 s%d, s%d, s%d" % (sTmp2, sTmp2, sL))
            a("s_add_u32 s%d, s%d, 1" % (sTmp2, sTmp2))
            a("s_and_b32 s%d, s%d, 3" % (sTmp2, sTmp2))
    def U_items(j):
        def one(jj):
            if jj == 0:
                pair_of(j)
                a("s_and_b32 s3, s%d, 12" % sHP)
                a("s_add_u32 s%d, s%d, s3" % (sTmp2, sTmp2))
                a("s_lshl_b32 s%d, s%d, 1" % (sTmp2, sTmp2))
                a("s_add_u32 s%d, s%d, %d" % (sTmp2, sTmp2, j & 1))
                a("s_lshl_b32 s%d, s%d, 17" % (sCB, sTmp2))
                a("s_lshl_b32 s3, s%d, 15" % sW)
                a("s_add_u32 s%d, s%d, s3" % (sCB, sCB))
                a("s_lshl_b32 s3, s%d, 8" % sL)
                a("s_add_u32 s%d, s%d, s3" % (sCB, sCB))
            a("s_add_u32 m0, s%d, %d" % (sW8k, USLOT[j % 3] + jj * 1024))
            a("s_add_u32 s%d, s%d, %d" % (sTmp, sCB, 4 * jj * 1024))
            a.vmem("buffer_load_dwordx4 v%d, s[%d:%d], s%d offen%s lds" % (vWo[jj & 1], SWO, SWO + 3, sTmp, WOF), "U%d" % j)
        return [(lambda jj=jj: one(jj)) for jj in range(8)]
    sOB = 72
    def O_items(j):
        def one(k):
            if k == 0:
                pair_of(j)
                a("s_and_b32 s3, s%d, 12" % sHP)
                a("s_add_u32 s%d, s%d, s3" % (sTmp2, sTmp2))
                a("s_lshl_b32 s%d, s%d, 1" % (sTmp2, sTmp2))
                a("s_add_u32 s%d, s%d, %d" % (sTmp2, sTmp2, j & 1))
                a("s_lshl_b32 s3, s%d, 5" % sB)
                a("s_add_u32 s%d, s%d, s3" % (sTmp2, sTmp2))
                a("s_mul_i32 s%d, s%d, 24576" % (sOB, sTmp2))
                a("s_mul_i32 s3, s%d, 6144" % sW)
                a("s_add_u32 s%d, s%d, s3" % (sOB, sOB))
                if OBASE: a("s_add_u32 s%d, s%d, %d" % (sOB, sOB, OBASE))
                a("s_mul_i32 s%d, s%d, 6144" % (sM0, sW))
            a("s_add_u32 m0, s%d, %d" % (sM0, (j & 1) * 24576 + k * 1024))
            a("s_add_u32 s%d, s%d, %d" % (sTmp, sOB, k * 1024))
            a.vmem("buffer_load_dwordx4 v%d, s[%d:%d], s%d offen%s lds" % (vL16, SWS, SWS + 3, sTmp, PLD), "O%d" % j)
        return [(lambda k=k: one(k)) for k in range(6)]
    def nonce_load():
        a("v_mov_b32 v4, 0")
        a.vmem("buffer_load_dwordx2 v[2:3], v4, s[%d:%d], 0 offen sc1" % (SDBG, SDBG + 3), "N")
    a("s_and_b32 s%d, s%d, 3" % (sL, sHP))
    a("s_and_b32 s%d, s%d, 7" % (sBi, sB))
    a("s_cmp_ge_u32 s%d, 6" % sBi)
    a("s_cselect_b32 s3, 6, 0")
    a("s_sub_u32 s%d, s%d, s3" % (sBi, sBi))
    a("s_cmp_ge_u32 s%d, 3" % sBi)
    a("s_cselect_b32 s3, 3, 0")
    a("s_sub_u32 s%d, s%d, s3" % (sBi, sBi))
    step(a.vcount("KV29"), U_items(0), "t0", 0, throttle_ok=False)
    step(a.vcount("KV30"), U_items(1), "t1", 1, throttle_ok=False)
    step(a.vcount("KV31"), U_items(2), "t2", 0, throttle_ok=False)
    step(len(a.vm), [nonce_load], "t3", 1, qk=False)
    stamp(5)

    F = lambda s, qt: 52 + (s * 3 + qt) * 4
    for qt in range(3):
        a("v_accvgpr_read_b32 v%d, a%d" % (vT[6 + qt], La(qt)))
    for qt in range(3):
        a("v_rcp_f32 v%d, v%d" % (vT[6 + qt], vT[6 + qt]))
    a("s_lshl_b32 s%d, s%d, 5" % (sPart, sB))
    a("s_add_u32 s%d, s%d, s%d" % (sPart, sPart, sH0))
    a("s_add_u32 s%d, s%d, s%d" % (sPart, sPart, sP))
    a("s_mul_i32 s%d, s%d, 6" % (sPart, sPart))
    a("s_mul_i32 s3, s%d, 3" % sQH)
    a("s_add_u32 s%d, s%d, s3" % (sPart, sPart))
    a("s_lshl_b32 s%d, s%d, 12" % (sPart, sPart))
    if OBASE: a("s_add_u32 s%d, s%d, %d" % (sPart, sPart, OBASE))
    a("s_barrier")
    a("s_mul_i32 s3, s%d, 12288" % sW)
    a("v_add_u32 v4, s3, v%d" % vL16)
    for qt in range(3):
        for s in range(4):
            d = F(s, qt)
            for ab in range(2):
                o = O(2 * s + ab, qt)
                for j in range(0, 4, 2):
                    a("v_pk_mul_f32 v[%d:%d], v[%d:%d], v[%d:%d] op_sel_hi:[1,0]" % (o + j, o + j + 1, o + j, o + j + 1, vT[6 + qt] & ~1, (vT[6 + qt] & ~1) + 1)) if False else None
                for j in range(4):
                    a("v_mul_f32 v%d, v%d, v%d" % (o + j, vT[6 + qt], o + j))
                a("v_cvt_pk_bf16_f32 v%d, v%d, v%d" % (d + 2 * ab, o, o + 1))
                a("v_cvt_pk_bf16_f32 v%d, v%d, v%d" % (d + 2 * ab + 1, o + 2, o + 3))
            a("s_add_u32 s%d, s%d, %d" % (sTmp, sPart, qt * 4096))
            a.vmem("buffer_store_dwordx4 %s, v%d, s[%d:%d], s%d offen offset:%d%s" % (vr(d), vL16, SWS, SWS + 3, sTmp, s * 1024, PST), "OS")
            a.lds("ds_write_b128 v4, %s offset:%d" % (vr(d), (s * 3 + qt) * 1024), "ex")
    a.lwait_all()
    a("s_barrier")
    Bo = lambda ks, qt: 152 + (ks * 3 + qt) * 4
    a("s_mul_i32 s3, s%d, 12288" % sQH)
    a("v_add_u32 v4, s3, v%d" % vL16)
    n = 0
    for pp in range(2):
        for s in range(4):
            for qt in range(3):
                if n == 12: a.lwait_all()
                a.lds("ds_read_b128 %s, v4 offset:%d" % (vr(Bo(4 * pp + s, qt)), pp * 24576 + (s * 3 + qt) * 1024), "bo")
                n += 1
    aO = [[34 + 4 * bb + nt for nt in range(4)] for bb in range(3)]
    a("s_lshl_b32 s3, s%d, 7" % sP)
    a("v_xor_b32 v%d, s3, v0" % aO[0][0])
    for nt in range(1, 4):
        a("v_xor_b32 v%d, %d, v%d" % (aO[0][nt], nt << 5, aO[0][0]))
    for bb in (1, 2):
        for nt in range(4):
            a("v_add_u32 v%d, %d, v%d" % (aO[bb][nt], 65536 * bb, aO[0][nt]))
    vOB = 46
    a("s_mul_i32 s3, s%d, 12288" % sQH)
    a("v_add_u32 v%d, s3, v%d" % (vOB, vL16))
    a.lwait_all()
    stamp(6)

    ACC = lambda nt, qt: 52 + (nt * 3 + qt) * 4
    Af = lambda buf, nt: 64 + buf * 16 + nt * 4
    Bf = lambda buf, qt: 100 + buf * 12 + qt * 4
    def a_read(j, kl, nt, u):
        base = USLOT[j % 3] + kl * 8192
        bb, off = base >> 16, base & 0xffff
        a.lds("ds_read_b64_tr_b16 %s, v%d offset:%d" % (ar(Af(kl & 1, nt) + 2 * u, 2), aO[bb][nt], off + u * 4096), "a%d_%d" % (j, kl))
    def b_read(j, kl, qt):
        a.lds("ds_read_b128 %s, v%d offset:%d" % (vr(Bf(kl & 1, qt)), vOB, (j & 1) * 24576 + (qt * 4 + kl) * 1024), "a%d_%d" % (j, kl))
    def AB_items(j, kl):
        it = []
        if j >= 2: it += [(lambda qt=qt: b_read(j, kl, qt)) for qt in range(3)]
        if j not in RES: it += [(lambda nt=nt, u=u: a_read(j, kl, nt, u)) for nt in range(4) for u in range(2)]
        return it
    RES = {2: 128, 3: 192} if opts.get('pull', True) else {}
    def pull(j):
        n = 0
        for kl in range(4):
            base = USLOT[j % 3] + kl * 8192
            bb, off = base >> 16, base & 0xffff
            for nt in range(4):
                for u in range(2):
                    if len(a.lg) >= 14: a.lwait(a.lg[7])
                    a.lds("ds_read_b64_tr_b16 %s, v%d offset:%d" % (ar(RES[j] + (kl * 4 + nt) * 4 + 2 * u, 2), aO[bb][nt], off + u * 4096), "p%d_%d" % (j, n))
                    n += 1

    def publish(own_off_code, uid):
        a("s_cmp_eq_u32 s%d, 0" % sW)
        a("s_cbranch_scc0 L_pskip_%s" % uid)
        a("s_mov_b32 s%d, 0" % sT)
        a.lab("L_nonce_%s" % uid)
        a("s_add_u32 s%d, s%d, 1" % (sT, sT))
        a("s_cmp_gt_u32 s%d, 0x40000" % sT)
        a("s_cbranch_scc1 L_pskip_%s" % uid)
        a("v_or_b32 v4, v2, v3")
        a("v_cmp_eq_u32 vcc, 0, v4")
        a("s_cbranch_vccz L_nok_%s" % uid)
        a("s_sleep 2")
        a("v_mov_b32 v4, 0")
        a("buffer_load_dwordx2 v[2:3], v4, s[%d:%d], 0 offen sc1" % (SDBG, SDBG + 3))
        a("s_waitcnt vmcnt(0)")
        a("s_branch L_nonce_%s" % uid)
        a.lab("L_nok_%s" % uid)
        own_off_code()
        a("v_mov_b32 v4, 0")
        a("buffer_store_dwordx2 v[2:3], v4, s[%d:%d], s%d offen sc1" % (SWS, SWS + 3, sTmp))
        a.lab("L_pskip_%s" % uid)
    def wait_flags(poll_off_code, nfl, uid):
        a("s_cmp_eq_u32 s%d, 0" % sW)
        a("s_cbranch_scc0 L_skip_%s" % uid)
        a("s_mov_b32 s%d, 0" % sT)
        poll_off_code()
        a("v_and_b32 v5, %d, v1" % (nfl - 1))
        a("v_lshlrev_b32 v5, 3, v5")
        a("buffer_load_dwordx2 v[6:7], v5, s[%d:%d], s%d offen sc1" % (SWS, SWS + 3, sTmp))
        a.lab("L_poll_%s" % uid)
        a("s_add_u32 s%d, s%d, 1" % (sT, sT))
        a("s_cmp_gt_u32 s%d, 0x40000" % sT)
        a("s_cbranch_scc1 L_pdone_%s" % uid)
        a("buffer_load_dwordx2 v[48:49], v5, s[%d:%d], s%d offen sc1" % (SWS, SWS + 3, sTmp))
        a("s_waitcnt vmcnt(1)")
        a("v_xor_b32 v6, v6, v2")
        a("v_xor_b32 v7, v7, v3")
        a("v_or_b32 v6, v6, v7")
        a("v_cmp_ne_u32 vcc, 0, v6")
        a("s_cbranch_vccz L_pdone_%s" % uid)
        a("buffer_load_dwordx2 v[6:7], v5, s[%d:%d], s%d offen sc1" % (SWS, SWS + 3, sTmp))
        a("s_waitcnt vmcnt(1)")
        a("v_xor_b32 v48, v48, v2")
        a("v_xor_b32 v49, v49, v3")
        a("v_or_b32 v48, v48, v49")
        a("v_cmp_ne_u32 vcc, 0, v48")
        a("s_cbranch_vccnz L_poll_%s" % uid)
        a.lab("L_pdone_%s" % uid)
        a("s_waitcnt vmcnt(0)")
        a.lab("L_skip_%s" % uid)
        a("s_barrier")

    def head(j, nxt_ready):
        mf = []; pre = {}; fill = {}
        for kl in range(4):
            for nt in range(4):
                for qt in range(3):
                    c = "0" if (j == 0 and kl == 0) else vr(ACC(nt, qt))
                    bsrc = vr(Bo(4 * j + kl, qt)) if j < 2 else vr(Bf(kl & 1, qt))
                    asrc = ar(RES[j] + (kl * 4 + nt) * 4) if j in RES else ar(Af(kl & 1, nt))
                    mf.append(lambda kl=kl, nt=nt, qt=qt, c=c, bsrc=bsrc, asrc=asrc: a("v_mfma_f32_16x16x32_bf16 %s, %s, %s, %s" % (vr(ACC(nt, qt)), asrc, bsrc, c)))
            pre[12 * kl] = [lambda kl=kl: a.lwait("a%d_%d" % (j, kl))]
            if kl < 3 and AB_items(j, kl + 1): spread(fill, AB_items(j, kl + 1), 12 * kl + 1, 12 * kl + 10)
        return mf, pre, fill

    a.vwait("U0")
    a("s_barrier")
    for f in AB_items(0, 0): f()
    mf, pre, fill = head(0, True)
    def bar0():
        a.vwait("U1"); a("s_barrier")
    pre[36].append(bar0)
    spread(fill, AB_items(1, 0), 37, 46)
    run_gaps(48, mf, pre, fill)
    mf, pre, fill = head(1, False)
    spread(fill, U_items(3), 1, 34)
    run_gaps(48, mf, pre, fill)
    a.vwait("OS")
    a.lwait_all()
    a("s_barrier")
    stamp(7)
    def ownA():
        a("s_lshl_b32 s%d, s%d, 7" % (sTmp, sB))
        a("s_lshl_b32 s3, s%d, 3" % sHP)
        a("s_add_u32 s%d, s%d, s3" % (sTmp, sTmp))
        a("s_add_u32 s%d, s%d, %d" % (sTmp, sTmp, FLAGB))
    def pollA():
        a("s_lshl_b32 s%d, s%d, 7" % (sTmp, sB))
        a("s_and_b32 s3, s%d, 12" % sHP)
        a("s_lshl_b32 s3, s3, 3")
        a("s_add_u32 s%d, s%d, s3" % (sTmp, sTmp))
        a("s_add_u32 s%d, s%d, %d" % (sTmp, sTmp, FLAGB))
    if opts.get('tdiag') == 1: stamp(1, True)
    publish(ownA, "A")
    if RES:
        for f in U_items(4): f()
        pull(2)
        a.vwait("U3")
        a.lwait_all()
        a("s_barrier")
        for f in U_items(5): f()
        pull(3)
        a.lwait_all()
        a("s_barrier")
        if not opts.get('u6late', True):
            for f in U_items(6): f()
    wait_flags(pollA, 4, "A")
    stamp(8)
    if opts.get('tdiag') == 1: stamp(2, True)
    EARLY = opts.get('oearly', True)
    for f in O_items(2): f()
    o3 = O_items(3)
    n3 = opts.get('o3_first', 6)
    for f in o3[:n3]: f()
    late_first = o3[n3:] + ([] if RES else U_items(4))
    a.vwait("O2")
    a("s_barrier")
    if opts.get('tdiag') == 1: stamp(3, True)
    for f in AB_items(2, 0): f()
    for j in range(2, 8):
        mf, pre, fill = head(j, True)
        dma = []; dma_late = []
        if j < 7:
            def nb(j=j):
                a.vwait("O%d" % (j + 1))
                a.vwait("U%d" % (j + 1))
                a("s_barrier")
            pre[36].append(nb)
            spread(fill, AB_items(j + 1, 0), 37, 47)
        if j == 2: dma += late_first
        if EARLY and j + 2 <= 7: dma_late += O_items(j + 2)
        if j >= 3:
            if not EARLY and j + 1 <= 7: dma += O_items(j + 1)
            if RES:
                if j == 5: dma += U_items(7)
            elif j + 2 <= 7: dma += U_items(j + 2)
        if RES and j == 2 and opts.get('u6late', True): dma += U_items(6)
        if dma: spread(fill, dma, 0, 24)
        if dma_late: spread(fill, dma_late, 37, 48)
        run_gaps(48, mf, pre, fill)
        if opts.get('tdiag') == 1: stamp(2 + j, True)
    stamp(9)
    if opts.get('tdiag') == 2: stamp(1, True)
    a("s_lshl_b32 s%d, s%d, 2" % (sPart, sB))
    a("s_add_u32 s%d, s%d, s%d" % (sPart, sPart, sL))
    a("s_lshl_b32 s%d, s%d, 2" % (sPart, sPart))
    a("s_lshr_b32 s3, s%d, 2" % sHP)
    a("s_add_u32 s%d, s%d, s3" % (sPart, sPart))
    a("s_mul_i32 s%d, s%d, 24" % (sPart, sPart))
    a("s_mul_i32 s3, s%d, 12" % sP)
    a("s_add_u32 s%d, s%d, s3" % (sPart, sPart))
    a("s_mul_i32 s3, s%d, 3" % sQH)
    a("s_add_u32 s%d, s%d, s3" % (sPart, sPart))
    a("s_lshl_b32 s%d, s%d, 10" % (sPart, sPart))
    a("s_add_u32 s%d, s%d, %d" % (sPart, sPart, P2BASE))
    k = 0
    for i in range(2):
        for qt in range(3):
            d = 100 + 4 * k
            for ab in range(2):
                o = ACC(2 * i + ab, qt)
                a("v_cvt_pk_bf16_f32 v%d, v%d, v%d" % (d + 2 * ab, o, o + 1))
                a("v_cvt_pk_bf16_f32 v%d, v%d, v%d" % (d + 2 * ab + 1, o + 2, o + 3))
            a("s_add_u32 s%d, s%d, %d" % (sTmp, sPart, (6 * i + qt) * 1024))
            a.vmem("buffer_store_dwordx4 %s, v%d, s[%d:%d], s%d offen%s" % (vr(d), vL16, SWS, SWS + 3, sTmp, PST), "P")
            k += 1
    if opts.get('tdiag') == 2: stamp(2, True)
    a("s_waitcnt vmcnt(0)")
    a.vm = []
    if opts.get('tdiag') == 2: stamp(3, True)
    a("s_barrier")
    if opts.get('tdiag') == 2: stamp(4, True)
    def ownB():
        a("s_lshl_b32 s%d, s%d, 2" % (sTmp, sB))
        a("s_add_u32 s%d, s%d, s%d" % (sTmp, sTmp, sL))
        a("s_lshl_b32 s%d, s%d, 7" % (sTmp, sTmp))
        a("s_lshr_b32 s3, s%d, 2" % sHP)
        a("s_lshl_b32 s3, s3, 3")
        a("s_add_u32 s%d, s%d, s3" % (sTmp, sTmp))
        a("s_add_u32 s%d, s%d, %d" % (sTmp, sTmp, FLAGB + 4096))
    def pollB():
        a("s_lshl_b32 s%d, s%d, 2" % (sTmp, sB))
        a("s_add_u32 s%d, s%d, s%d" % (sTmp, sTmp, sL))
        a("s_lshl_b32 s%d, s%d, 7" % (sTmp, sTmp))
        a("s_add_u32 s%d, s%d, %d" % (sTmp, sTmp, FLAGB + 4096))
    publish(ownB, "B")
    wait_flags(pollB, 4, "B")
    if opts.get('tdiag') == 2: stamp(5, True)
    R = lambda f: 64 + f * 4
    a("s_lshl_b32 s%d, s%d, 2" % (sPart, sB))
    a("s_add_u32 s%d, s%d, s%d" % (sPart, sPart, sL))
    a("s_lshl_b32 s%d, s%d, 2" % (sPart, sPart))
    a("s_add_u32 s%d, s%d, s%d" % (sPart, sPart, sW))
    a("s_mul_i32 s%d, s%d, 24" % (sPart, sPart))
    a("s_lshr_b32 s3, s%d, 2" % sHP)
    a("s_mul_i32 s3, s3, 6")
    a("s_add_u32 s%d, s%d, s3" % (sPart, sPart))
    a("s_lshl_b32 s%d, s%d, 10" % (sPart, sPart))
    a("s_add_u32 s%d, s%d, %d" % (sPart, sPart, P2BASE))
    for f in range(6):
        a("s_add_u32 s%d, s%d, %d" % (sTmp, sPart, f * 1024))
        a.vmem("buffer_load_dwordx4 %s, v%d, s[%d:%d], s%d offen%s" % (vr(R(f)), vL16, SWS, SWS + 3, sTmp, PLD), "R%d" % f)
    AC = lambda f: 160 + 8 * f
    a("s_mul_i32 s3, s%d, 12288" % sW)
    a("v_add_u32 v4, s3, v%d" % vL16)
    for f in range(6):
        a.vwait("R%d" % f)
        for d in range(4):
            x = R(f) + d
            a("v_lshlrev_b32 v%d, 16, v%d" % (AC(f) + 2 * d, x))
            a("v_and_b32 v%d, 0xffff0000, v%d" % (AC(f) + 2 * d + 1, x))
        for ab in range(2):
            a.lds("ds_write_b128 v4, %s offset:%d" % (vr(AC(f) + 4 * ab), (2 * f + ab) * 1024), "fw")
    a.lwait_all()
    if opts.get('tdiag') == 2: stamp(6, True)
    a("s_barrier")
    a("s_mul_i32 s3, s%d, 3072" % sW)
    a("v_add_u32 v4, s3, v%d" % vL16)
    for i in range(3):
        for ww in range(4):
            a.lds("ds_read_b128 %s, v4 offset:%d" % (vr(64 + (i * 4 + ww) * 4), ww * 12288 + i * 1024), "fr%d" % i)
    a("v_and_b32 v5, 15, v1")
    a("v_lshrrev_b32 v6, 4, v1")
    a("v_lshlrev_b32 v6, 3, v6")
    a("v_lshl_add_u32 v5, v5, 10, v6")
    a("s_mul_i32 s%d, s%d, %d" % (sPart, sB, 96 * 1024))
    a("s_lshl_b32 s3, s%d, 8" % sL)
    a("s_add_u32 s%d, s%d, s3" % (sPart, sPart))
    a("s_lshr_b32 s3, s%d, 2" % sHP)
    a("s_lshl_b32 s3, s3, 6")
    a("s_add_u32 s%d, s%d, s3" % (sPart, sPart))
    for i in range(3):
        a("s_mul_i32 s3, s%d, 3" % sW)
        a("s_add_u32 s3, s3, %d" % i)
        a("s_lshr_b32 s%d, s3, 1" % sTmp)
        a("s_lshl_b32 s%d, s%d, 14" % (sTmp, sTmp))
        a("s_and_b32 s3, s3, 1")
        a("s_lshl_b32 s3, s3, 5")
        a("s_add_u32 s%d, s%d, s3" % (sTmp, sTmp))
        a("s_add_u32 s%d, s%d, s%d" % (sTmp, sTmp, sPart))
        a.lwait("fr%d" % i)
        b = 64 + i * 16
        for j in range(4):
            a("v_add_f32 v%d, v%d, v%d" % (b + j, b + j, b + 4 + j))
            a("v_add_f32 v%d, v%d, v%d" % (b + 8 + j, b + 8 + j, b + 12 + j))
        for j in range(4):
            a("v_add_f32 v%d, v%d, v%d" % (b + j, b + j, b + 8 + j))
        a("v_cvt_pk_bf16_f32 v%d, v%d, v%d" % (b, b, b + 1))
        a("v_cvt_pk_bf16_f32 v%d, v%d, v%d" % (b + 1, b + 2, b + 3))
        a("buffer_store_dwordx2 %s, v5, s[%d:%d], s%d offen" % (vr(b, 2), SOUT, SOUT + 3, sTmp))
    if opts.get('tdiag') == 2: stamp(7, True)
    if ST:
        a("s_waitcnt vmcnt(0)")
        stamp(10)
        a("s_cmp_eq_u32 s%d, 0" % sW)
        a("s_cbranch_scc0 L_st")
        a("s_mul_i32 s3, s2, %d" % (NSTAMP * 8))
        a("s_add_u32 s3, s3, 0x%x" % STAMPB)
        a("v_mov_b32 v2, 0")
        a("v_cmp_eq_u32 vcc, 0, v1")
        a("s_and_saveexec_b64 s[72:73], vcc")
        for i in range(11):
            a("v_mov_b32 v4, s%d" % (76 + 2 * i))
            a("v_mov_b32 v5, s%d" % (77 + 2 * i))
            a("buffer_store_dwordx2 v[4:5], v2, s[%d:%d], s3 offen offset:%d" % (SWS, SWS + 3, i * 8))
            a("s_waitcnt vmcnt(0)")
        if opts.get('dbgstamps'):
            for k, idx in enumerate(opts['dbgstamps']):
                a("v_mov_b32 v4, s%d" % (76 + 2 * idx))
                a("v_not_b32 v5, v4")
                a("buffer_atomic_umax v4, v2, s[%d:%d], 0 offen offset:%d" % (SDBG, SDBG + 3, 8 + 8 * k))
                a("buffer_atomic_umax v5, v2, s[%d:%d], 0 offen offset:%d" % (SDBG, SDBG + 3, 12 + 8 * k))
                a("s_waitcnt vmcnt(0)")
        a("s_mov_b64 exec, s[72:73]")
        a.lab("L_st")
    a("s_endpgm")
    for uid, buf in rare_blocks:
        rare(uid, buf)
    a.lab("L_end")
    a("s_endpgm")
    return a

def build(opts, verbose=False):
    k = gen(dict(opts))
    txt = header(["grid=(256,1,1) block=(256,1,1) lds=163840"], opts.get('comment', ""))
    lines, n = hazard.fix(k.lines, verbose, "g")
    errs = hazard.check_counters(lines, "g")
    for e in errs[:20]: print("ERR", e)
    if verbose: print("nops inserted:", n, "lines:", len(lines))
    txt += "\n".join(lines) + "\n"
    e = hazard.lint_srd(txt)
    assert not e, e
    txt += descriptor(KNAME, 512, 100, 256)
    return txt

if __name__ == "__main__":
    v = "-v" in sys.argv
    base = dict(touch=False, dspread=(2, 46), throttle=5, tlb=True, rot2=True, qmap2=True, qm2_burst=6)
    open("h8_dbg.s", "w").write(build(dict(base, stamps=True, dbgstamps=[0, 1, 4, 5, 8, 9, 10])))
    open("h8_dbg_nont.s", "w").write(build(dict(base, nt=False, stamps=True, dbgstamps=[0, 1, 4, 5, 8, 9, 10])))
```

```python
import sys, math, struct
from asmlib import *
import hazard

C_SCALE = math.log2(math.e) / math.sqrt(128.0)
def fbits(x): return struct.unpack("<I", struct.pack("<f", x))[0]
PBASE = 0x0
OBASE = 0x0
P2BASE = 0x1000000
FLAGB = 0x2000000
STAMPB = 0x1F000000
NSTAMP = 12

class G(Asm):
    def __init__(self):
        super().__init__()
        self.vm = []; self.lg = []
    def vmem(self, s, tag):
        self(s); self.vm.append(tag)
    def vcount(self, tag):
        idx = max(i for i, t in enumerate(self.vm) if t == tag)
        n = len(self.vm) - 1 - idx
        self.vm = self.vm[idx + 1:]
        assert n <= 63
        return n
    def vwait(self, tag):
        if tag not in self.vm: return
        self("s_waitcnt vmcnt(%d)" % self.vcount(tag))
    def lds(self, s, tag):
        self(s); self.lg.append(tag)
        assert len(self.lg) <= 15, ("lds overflow", s)
    def lwait(self, tag):
        if tag not in self.lg: return
        idx = max(i for i, t in enumerate(self.lg) if t == tag)
        n = len(self.lg) - 1 - idx
        self.lg = self.lg[idx + 1:]
        self("s_waitcnt lgkmcnt(%d)" % n)
    def lwait_all(self):
        if self.lg:
            self("s_waitcnt lgkmcnt(0)"); self.lg = []

def run_gaps(n, mf, pre, fill):
    for g in range(n):
        for f in pre.get(g, []): f()
        mf[g]()
        for f in fill.get(g, []): f()
def spread(fill, items, g0, g1):
    n = len(items); m = g1 - g0
    for k, it in enumerate(items):
        g = g0 + (k * m) // n
        fill.setdefault(g, []).append(it)

def gen(opts):
    a = G()
    ST = opts.get('stamps')
    def cstamp(idx):
        a("s_memtime s[%d:%d]" % (76 + 2 * idx, 77 + 2 * idx))
    def stamp(idx, o=False):
        if not ST: return
        if opts.get('tdiag') and not o and idx not in (0, 10): return
        if (opts.get('odiag') or opts.get('q_stamps') or opts.get('s_stamps') or opts.get('qd') is not None) and not o and idx not in (0, 1, 10): return
        a("s_memrealtime s[%d:%d]" % (76 + 2 * idx, 77 + 2 * idx))
        a("s_waitcnt lgkmcnt(0)")
        a.lg = []
    NT = " nt" if opts.get('nt', True) else ""
    WNT = opts.get('wq_flags', ""); XNT = opts.get('x_flags', ""); WOF = opts.get('wo_flags', "")
    PST = opts.get('p_st', " sc1"); PLD = opts.get('p_ld', " sc1")
    ROT = opts.get('rot', True)
    T_LOG2 = opts.get('T', 8.0)
    vKd = [10, 11, 12, 13]; vVd = [14, 15]; vWd = 16; vXd = [17, 9]; aX = [7, 8]
    aK = [18, 19, 20, 21]; aV = list(range(22, 30)); aW = list(range(112, 120)); vWd2 = 33
    vMC = [34, 35, 36]; vT = list(range(37, 46))
    vWo = [30, 31]; vL16 = 32
    Sb = lambda buf, kt, qt: 52 + 24 * buf + (kt * 3 + qt) * 4
    P = lambda qt: 100 + 4 * qt
    O = lambda dt, qt: 152 + (dt * 3 + qt) * 4
    Xf = lambda ks, qt: 52 + (ks * 3 + qt) * 4
    Qa = lambda s, qt: (s * 3 + qt) * 4
    La = lambda qt: 48 + 4 * qt
    ONES = 60
    Kf = lambda s, kt: 64 + (s * 2 + kt) * 4
    Vf = lambda dt: 96 + 4 * dt
    Wf = lambda buf, dt: 128 + buf * 32 + dt * 4
    vr = lambda b, n=4: "v[%d:%d]" % (b, b + n - 1)
    ar = lambda b, n=4: "a[%d:%d]" % (b, b + n - 1)
    sW = 40; sH0 = 41; sB = 42; sQH = 43; sKV = 44; sCur = 45; sPrev = 46; sDK = 47; sWoff = 48; sT = 49
    sXo = 50; sP = 51; sC0 = 52; sWq = 53; sC = 54; sTmp = 55; sTmp2 = 56; sDV = 57
    sHP = 58; sW8k = 59; sW3k = 60; sCh = 61; sChX = 62; sWoB = 63; sR0 = 64; sPart = 65; sN = 66
    sNxt = 68; sCB = 69; sM0 = 70
    SX, SK, SV, SWQ, SWS, SWO, SOUT, SDBG = 20, 24, 28, 32, 36, 4, 8, 12

    a(kernel_begin(KNAME))
    a("s_cmp_ge_u32 s2, 256")
    a("s_cbranch_scc1 L_end")
    stamp(0)
    a("s_load_dwordx16 s[52:67], s[0:1], 0")
    a("v_lshrrev_b32 v2, 6, v0")
    a("v_and_b32 v1, 63, v0")
    a("v_readfirstlane_b32 s%d, v2" % sW)
    a("v_lshrrev_b32 v2, 4, v1")
    a("v_and_b32 v3, 15, v1")
    for kk, reg in ((0, vWd), (1, vWd2)):
        a("v_add_u32 v4, %d, v2" % (4 * kk))
        a("v_lshlrev_b32 v4, 1, v4")
        a("v_xor_b32 v4, v3, v4")
        a("v_lshlrev_b32 v4, 4, v4")
        a("v_lshl_add_u32 v%d, v2, 13, v4" % reg)
    a("v_and_b32 v5, 7, v1")
    a("v_lshrrev_b32 v6, 3, v1")
    for jp in range(2):
        a("s_add_u32 s3, s%d, %d" % (sW, jp))
        a("s_and_b32 s3, s3, 1")
        a("s_lshl_b32 s3, s3, 2")
        a("v_add_u32 v4, s3, v2")
        a("v_xor_b32 v4, v5, v4")
        a("v_lshlrev_b32 v4, 4, v4")
        a("v_lshl_add_u32 v%d, v6, 10, v4" % vXd[jp])
    a("s_and_b32 s16, s2, 7")
    a("s_lshr_b32 s17, s2, 3")
    a("s_and_b32 s18, s16, 3")
    a("s_lshl_b32 s18, s18, 2")
    a("s_and_b32 s3, s17, 3")
    a("s_add_u32 s18, s18, s3")
    a("s_lshl_b32 s%d, s18, 1" % sH0)
    a("s_lshr_b32 s%d, s16, 2" % sB)
    a("s_lshl_b32 s%d, s%d, 3" % (sB, sB))
    a("s_lshr_b32 s17, s17, 2")
    a("s_add_u32 s%d, s%d, s17" % (sB, sB))
    if ROT:
        if opts.get('rot2'):
            a("s_add_u32 s3, s3, s17")
            a("s_and_b32 s3, s3, 3")
            a("s_lshl_b32 s19, s3, 1")
        else:
            a("s_lshl_b32 s3, s3, 1")
            a("s_add_u32 s3, s3, s17")
            a("s_and_b32 s19, s3, 7")
        a("s_and_b32 s17, s17, 3")
    else:
        a("s_mov_b32 s19, 0")
        a("s_mov_b32 s17, 0")
    a("s_lshr_b32 s%d, s%d, 1" % (sP, sW))
    a("s_and_b32 s%d, s%d, 1" % (sQH, sW))
    a("s_mul_i32 s%d, s%d, 96" % (sXo, sB))
    a("s_mul_i32 s3, s%d, 24" % sW)
    a("s_add_u32 s%d, s%d, s3" % (sXo, sXo))
    a("s_lshl_b32 s%d, s%d, 10" % (sXo, sXo))
    a("s_waitcnt lgkmcnt(0)")
    if opts.get('s_stamps'): stamp(2, True)
    srd(a, SWQ, 58, 0x400000)
    srd(a, SX, 52, 16 * 96 * 512 * 2)
    srd(a, SK, 54, 0x8000000)
    srd(a, SV, 56, 0x8000000)
    srd(a, SWO, 60, 0x400000)
    srd(a, SOUT, 62, 16 * 96 * 512 * 2)
    srd(a, SDBG, 64, 256)
    srd(a, SWS, 66, 0x20000000)
    a("s_mov_b32 s%d, s18" % sHP)
    a("s_mov_b32 s%d, s19" % sC0)
    a("s_mov_b32 s%d, s17" % sR0)
    a("s_lshl_b32 s%d, s%d, 18" % (sWq, sQH))
    a("s_add_u32 s3, s%d, s%d" % (sH0, sP))
    a("s_lshl_b32 s3, s3, 8")
    a("s_add_u32 s%d, s%d, s3" % (sWq, sWq))
    a("s_lshl_b32 s%d, s%d, 13" % (sW8k, sW))
    a("s_mul_i32 s%d, s%d, 3072" % (sW3k, sW))

    CB = [28672, 73728, 118784]
    QM2 = opts.get('qmap2', False)
    def cbase(i):
        if QM2: return CB[[0, 1, 2, 0, 1, 2, 1, 2][i]]
        return CB[(i + 1) % 3]
    def C_items(i):
        items = []
        def head():
            a("s_add_u32 s%d, s%d, %d" % (sCh, sC0, i))
            a("s_and_b32 s%d, s%d, 7" % (sCh, sCh))
            a("s_lshl_b32 s%d, s%d, 7" % (sChX, sCh))
            a("s_add_u32 s%d, s%d, s%d" % (sChX, sChX, sXo))
            a("s_lshl_b32 s%d, s%d, 19" % (sCh, sCh))
            a("s_add_u32 s%d, s%d, s%d" % (sCh, sCh, sWq))
        def wq(jj):
            if jj == 0: head()
            a("s_add_u32 m0, s%d, %d" % (sW8k, cbase(i) + jj * 1024))
            a("s_add_u32 s%d, s%d, %d" % (sTmp, sCh, 4 * jj * 8192))
            a.vmem("buffer_load_dwordx4 v%d, s[%d:%d], s%d offen%s lds" % (vWd2 if (jj >> 1) & 1 else vWd, SWQ, SWQ + 3, sTmp, WNT), "C%d" % i)
        def xx(j):
            a("s_add_u32 m0, s%d, %d" % (sW3k, cbase(i) + 32768 + j * 1024))
            a("s_add_u32 s%d, s%d, %d" % (sTmp, sChX, 8 * j * 1024))
            a.vmem("buffer_load_dwordx4 v%d, s[%d:%d], s%d offen%s lds" % (vXd[j & 1], SX, SX + 3, sTmp, XNT), "C%d" % i)
        for jj in range(8): items.append(lambda jj=jj: wq(jj))
        for j in range(3): items.append(lambda j=j: xx(j))
        return items
    for it in C_items(0): it()
    if opts.get('s_stamps'): stamp(3, True)
    for it in C_items(1): it()
    if opts.get('s_stamps'): stamp(4, True)
    if opts.get('tlb', True):
        a("v_mov_b32 v5, 0")
        a("s_lshl_b32 s3, s%d, 5" % sB)
        a("s_add_u32 s3, s3, s%d" % sH0)
        a("s_add_u32 s3, s3, s%d" % sP)
        a("s_lshl_b32 s3, s3, 18")
        a.vmem("buffer_load_dword v46, v5, s[%d:%d], s3 offen nt" % (SV, SV + 3), "T")
        a("s_lshl_b32 s3, s%d, 17" % sH0)
        a.vmem("buffer_load_dword v47, v5, s[%d:%d], s3 offen" % (SWO, SWO + 3), "T")
        a("s_lshl_b32 s3, s%d, 4" % sB)
        a("s_add_u32 s3, s3, s%d" % sHP)
        a("s_mul_i32 s3, s3, %d" % (96 * 1024))
        a.vmem("buffer_load_dword v48, v5, s[%d:%d], s3 offen nt" % (SWS, SWS + 3), "T")

    for jj in range(4):
        a("v_add_u32 v4, %d, v2" % (4 * jj))
        a("v_xor_b32 v4, v3, v4")
        a("v_lshlrev_b32 v4, 4, v4")
        a("v_lshl_add_u32 v%d, v2, 8, v4" % vKd[jj])
    for jp in range(2):
        a("v_add_u32 v4, %d, v2" % (4 * jp))
        a("v_lshlrev_b32 v4, 1, v4")
        a("v_xor_b32 v4, v3, v4")
        a("v_lshlrev_b32 v4, 4, v4")
        a("v_lshl_add_u32 v%d, v2, 8, v4" % vVd[jp])
    a("s_lshl_b32 s%d, s%d, 13" % (sWoff, sP))
    a("s_lshl_b32 s3, s%d, 12" % sQH)
    a("s_add_u32 s%d, s%d, s3" % (sWoff, sWoff))
    a("s_lshl_b32 s%d, s%d, 5" % (sKV, sB))
    a("s_add_u32 s%d, s%d, s%d" % (sKV, sKV, sH0))
    a("s_add_u32 s%d, s%d, s%d" % (sKV, sKV, sP))
    a("s_lshl_b32 s%d, s%d, 18" % (sKV, sKV))
    a("s_add_u32 s%d, s%d, s3" % (sKV, sKV))

    def KV_items(tag, slot_sgpr=None, slot_const=None, which="KV", goff=None):
        items = []
        def mk(n, first, last):
            def f():
                isv = n >= 4; jj = n & 3
                mixed = opts.get('_mixed')
                if slot_sgpr is not None:
                    if first: a("s_add_u32 s%d, s%d, s%d" % (sM0, slot_sgpr, sWoff))
                    if jj == 0 or mixed: a("s_add_u32 m0, s%d, %d" % (sM0, 16384 if isv else 0))
                else:
                    if jj == 0 or mixed: a("s_add_u32 m0, s%d, %d" % (sWoff, slot_const + (16384 if isv else 0)))
                so = sKV
                if goff:
                    a("s_add_u32 s%d, s%d, %d" % (sTmp, sKV, goff)); so = sTmp
                elif jj == 0 or mixed: a("s_nop 0")
                if isv:
                    a.vmem("buffer_load_dwordx4 v%d, s[%d:%d], s%d offen offset:%d%s lds" % (vVd[jj & 1], SV, SV + 3, so, jj * 1024, NT), tag)
                else:
                    a.vmem("buffer_load_dwordx4 v%d, s[%d:%d], s%d offen offset:%d%s lds" % (vKd[jj], SK, SK + 3, so, jj * 1024, NT), tag)
                if last and goff is None:
                    a("s_add_u32 s%d, s%d, %d" % (sKV, sKV, 0 if opts.get('kvsame') else 8192))
            return f
        ns = [n for n in range(8) if (n < 4 and "K" in which) or (n >= 4 and "V" in which)]
        return [mk(n, k == 0, k == len(ns) - 1) for k, n in enumerate(ns)]

    a("v_lshrrev_b32 v5, 2, v3")
    a("v_and_b32 v6, 3, v1")
    a("s_lshl_b32 s3, s%d, 13" % sP)
    for s in range(4):
        a("v_add_u32 v4, %d, v2" % (4 * s))
        a("v_xor_b32 v4, v4, v3")
        a("v_lshlrev_b32 v4, 4, v4")
        a("v_lshl_add_u32 v4, v3, 8, v4")
        a("v_add_u32 v%d, s3, v4" % aK[s])
    a("v_lshl_add_u32 v4, v2, 2, v5")
    a("v_and_b32 v0, 7, v4")
    a("v_lshlrev_b32 v0, 5, v0")
    a("v_lshl_add_u32 v0, v4, 8, v0")
    a("v_lshl_add_u32 v0, v6, 3, v0")
    a("s_add_u32 s%d, s3, 16384" % sTmp)
    a("v_add_u32 v%d, s%d, v0" % (aV[0], sTmp))
    a("s_lshl_b32 s3, s%d, 14" % sP)
    for dt in range(1, 8):
        a("v_xor_b32 v%d, %d, v%d" % (aV[dt], dt << 5, aV[0]))
    a("v_and_b32 v7, 1, v2")
    a("v_lshl_add_u32 v7, v7, 2, v5")
    a("v_lshl_add_u32 v4, v2, 3, v5")
    a("v_lshlrev_b32 v4, 8, v4")
    a("v_lshl_add_u32 v4, v7, 5, v4")
    a("v_lshl_add_u32 v4, v6, 3, v4")
    a("v_add_u32 v%d, s3, v4" % aW[0])
    for dt in range(1, 8):
        a("v_xor_b32 v%d, %d, v%d" % (aW[dt], dt << 5, aW[0]))
    a("v_lshrrev_b32 v4, 1, v3")
    a("s_mul_i32 s3, s%d, 6144" % sQH)
    a("s_add_u32 s3, s3, 32768")
    for ks in range(2):
        a("v_add_u32 v5, %d, v2" % (4 * ks))
        a("v_xor_b32 v5, v5, v4")
        a("v_lshlrev_b32 v5, 4, v5")
        a("v_lshl_add_u32 v5, v3, 7, v5")
        a("v_add_u32 v%d, s3, v5" % aX[ks])
    a("s_mov_b32 s%d, 0x%x" % (sC, fbits(C_SCALE)))
    a("v_mov_b32 v4, 0x3f803f80")
    for i in range(4):
        a("v_accvgpr_write_b32 a%d, v4" % (ONES + i))
    for i in range(12):
        a("v_accvgpr_write_b32 a%d, 0" % (48 + i))
    a("s_or_b32 s3, s2, s%d" % sW)
    a("s_cmp_eq_u32 s3, 0")
    a("s_cbranch_scc0 L_nononce")
    a("s_memrealtime s[%d:%d]" % (sN, sN + 1))
    a("s_waitcnt lgkmcnt(0)")
    a("s_or_b32 s%d, s%d, 1" % (sN, sN))
    a("v_mov_b32 v4, s%d" % sN)
    a("v_mov_b32 v5, s%d" % (sN + 1))
    a("v_mov_b32 v6, 0")
    a("buffer_store_dwordx2 v[4:5], v6, s[%d:%d], 0 offen sc1" % (SDBG, SDBG + 3))
    a.lab("L_nononce")

    tW = list(range(120, 128)); tX = [vT[4], vT[5]]
    opts['_mixed'] = True
    step_off = 0 if opts.get('kvsame') else 8192
    def touch_items():
        TF = opts.get('touch_flags', "")
        def prep():
            a("v_lshlrev_b32 v5, 7, v1")
            a("s_and_b32 s%d, s%d, 0xfffc0000" % (sTmp2, sKV))
            a("s_add_u32 s3, s%d, 1" % sQH)
            a("s_lshl_b32 s3, s3, 13")
            a("s_add_u32 s%d, s%d, s3" % (sTmp2, sTmp2))
        def tk():
            prep()
            a.vmem("buffer_load_dword v46, v5, s[%d:%d], s%d offen%s" % (SK, SK + 3, sTmp2, TF), "T")
        def tv():
            prep()
            a.vmem("buffer_load_dword v47, v5, s[%d:%d], s%d offen%s" % (SV, SV + 3, sTmp2, TF), "T")
        return [tk, tv]
    def x_read(i, ks, qt): a.lds("ds_read_b128 %s, v%d offset:%d" % (vr(Xf(ks, qt)), tX[ks], qt * 2048), "x%d" % ks)
    def w_read(tl, dt, u):
        a.lds("ds_read_b64_tr_b16 %s, v%d offset:%d" % (ar(Wf(tl, dt) + 2 * u, 2), tW[dt], tl * 8192 + u * 1024), "w%d_%d" % (tl, dt))
    W = lambda tl, dts: [(lambda tl=tl, dt=dt, u=u: w_read(tl, dt, u)) for dt in dts for u in range(2)]
    def q_addr(i):
        return [(lambda sp=sp: a("v_add_u32 v%d, %d, v%d" % (tW[sp], cbase(i), aW[sp]))) for sp in range(8)] + \
               [(lambda ks=ks: a("v_add_u32 v%d, %d, v%d" % (tX[ks], cbase(i), aX[ks]))) for ks in range(2)]
    def q_first(i):
        return [(lambda qt=qt: x_read(i, 0, qt)) for qt in range(3)] + W(0, range(0, 4))
    win = {}
    for i in range(0, 3 if QM2 else 5): win[i] = C_items(i + 3) if not opts.get('q_nodma') else []
    win[5] = KV_items("KV0", slot_const=0, which="V", goff=None) + KV_items("KV1", slot_const=32768) if False else None
    k0 = KV_items("K0", slot_const=0, which="K", goff=0)
    win[5] = KV_items("V0", slot_const=0, which="V") + KV_items("KV1", slot_const=32768)
    if QM2:
        kvall = win[5]; nb_ = opts.get('qm2_burst', 12)
        win[3] = kvall[:nb_]; win[4] = C_items(6); win[5] = C_items(7) + kvall[nb_:]
    win[6] = KV_items("KV2", slot_const=65536)
    win[7] = KV_items("KV3", slot_const=98304)
    TOUCH = opts.get('touch', True)
    pending = C_items(2) + k0 + (touch_items() if TOUCH else [])
    if opts.get('s_stamps'): stamp(5, True)
    a.vwait("C0")
    stamp(1)
    a("s_barrier")
    for f in q_addr(0) + q_first(0): f()
    LB = 36
    for i in range(8):
        mf = []; pre = {}; fill = {}
        for tl in range(2):
            for dt in range(8):
                for qt in range(3):
                    c = "0" if (i == 0 and tl == 0) else vr(O(dt, qt))
                    mf.append(lambda tl=tl, dt=dt, qt=qt, c=c: a("v_mfma_f32_16x16x32_bf16 %s, %s, %s, %s" % (vr(O(dt, qt)), ar(Wf(tl, dt)), vr(Xf(tl, qt)), c)))
        for tl in range(2):
            for dt in (1, 3, 5, 7):
                g = tl * 24 + (dt - 1) * 3
                pre.setdefault(g, []).append(lambda tl=tl, dt=dt: a.lwait("w%d_%d" % (tl, dt)))
        spread(fill, W(0, range(4, 8)), 0, 6)
        spread(fill, [lambda qt=qt, i=i: x_read(i, 1, qt) for qt in range(3)] + W(1, range(0, 4)), 12, 20)
        spread(fill, W(1, range(4, 8)), 24, 30)
        qd = opts.get('qd')
        def late(i=i):
            a.lwait("w1_7")
            if qd == i: stamp(4, True)
            if i < 7: a.vwait("C%d" % (i + 1))
            if qd == i: stamp(5, True)
            if opts.get('q_stamps'): stamp(2 + i, True)
            if i in (2, 6): stamp({2: 2, 6: 3}[i])
            a("s_barrier")
            if qd == i: stamp(6, True)
        if qd == i:
            pre.setdefault(0, []).insert(0, lambda: stamp(1, True))
            pre.setdefault(12, []).insert(0, lambda: stamp(2, True))
            pre.setdefault(24, []).insert(0, lambda: stamp(3, True))
        if qd == i - 1:
            pre.setdefault(0, []).insert(0, lambda: stamp(7, True))
        pre.setdefault(LB, []).append(late)
        w = win.get(i, [])
        nfirst = (len(w) * (48 - LB)) // 46
        if i == 7: nfirst = len(w)
        if QM2 and i in (4, 5): nfirst = min(len(w), opts.get('qm2_first', 6))
        if pending: spread(fill, pending, 0, (opts.get('qm2_end', 14) if (QM2 and i in (5, 6)) else LB - 2))
        if nfirst: spread(fill, w[:nfirst], LB + 1, 48)
        pending = w[nfirst:]
        if i < 7:
            spread(fill, q_addr(i + 1), LB, LB + 3)
            spread(fill, q_first(i + 1), LB + 3, 48)
        run_gaps(48, mf, pre, fill)
    assert not pending and not a.lg, (pending, a.lg)
    opts['_mixed'] = False
    k = 0
    cvt_sets = [[112 + 4 * j + i for i in range(4)] for j in range(4)]
    work = [(sp, qt) for sp in range(4) for qt in range(3)]
    def q_cvt(n):
        sp, qt = work[n]; t = cvt_sets[n & 3]
        oa, ob = O(2 * sp, qt), O(2 * sp + 1, qt)
        a("v_cvt_pk_bf16_f32 v%d, v%d, v%d" % (t[0], oa, oa + 1))
        a("v_cvt_pk_bf16_f32 v%d, v%d, v%d" % (t[1], oa + 2, oa + 3))
        a("v_cvt_pk_bf16_f32 v%d, v%d, v%d" % (t[2], ob, ob + 1))
        a("v_cvt_pk_bf16_f32 v%d, v%d, v%d" % (t[3], ob + 2, ob + 3))
    def q_s32(n):
        t = cvt_sets[n & 3]
        a("v_permlane32_swap_b32 v%d, v%d" % (t[0], t[2]))
        a("v_permlane32_swap_b32 v%d, v%d" % (t[1], t[3]))
    def q_s16(n):
        t = cvt_sets[n & 3]
        a("v_permlane16_swap_b32 v%d, v%d" % (t[0], t[2]))
        a("v_permlane16_swap_b32 v%d, v%d" % (t[1], t[3]))
    def q_wr(n):
        sp, qt = work[n]; t = cvt_sets[n & 3]
        for i in range(4):
            a("v_accvgpr_write_b32 a%d, v%d" % (Qa(sp, qt) + i, t[i]))
    for n in range(12 + 3):
        if n < 12: q_cvt(n)
        if 0 <= n - 1 < 12: q_s32(n - 1)
        if 0 <= n - 2 < 12: q_s16(n - 2)
        if 0 <= n - 3 < 12: q_wr(n - 3)
    for jp in range(2):
        a("v_add_u32 v4, %d, v2" % (4 * jp))
        a("v_lshlrev_b32 v4, 1, v4")
        a("v_xor_b32 v4, v3, v4")
        a("v_lshlrev_b32 v4, 4, v4")
        a("v_lshl_add_u32 v%d, v2, 10, v4" % vWo[jp])
    a("v_lshlrev_b32 v%d, 4, v1" % vL16)
    a("s_lshl_b32 s%d, s%d, 17" % (sWoB, sH0))
    a("s_lshl_b32 s3, s%d, 15" % sW)
    a("s_add_u32 s%d, s%d, s3" % (sWoB, sWoB))
    stamp(4)

    def k_read(s, kt): a.lds("ds_read_b128 %s, v%d offset:%d" % (ar(Kf(s, kt)), aK[s], kt * 4096), "k%d" % s)
    def v_read(dt, u): a.lds("ds_read_b64_tr_b16 %s, v%d offset:%d" % (ar(Vf(dt) + 2 * u, 2), aV[dt], u * 4096), "v%d" % dt)
    def qk_mfma(buf, m):
        s, kt, qt = m // 6, (m % 6) // 3, m % 3
        c = "0" if s == 0 else vr(Sb(buf, kt, qt))
        a("v_mfma_f32_16x16x32_bf16 %s, %s, %s, %s" % (vr(Sb(buf, kt, qt)), ar(Kf(s, kt)), ar(Qa(s, qt)), c))

    for s in range(4):
        for kt in range(2): k_read(s, kt)
    for i in range(96):
        a("v_mov_b32 v%d, 0" % (152 + i))
    for m in range(24):
        if m % 6 == 0: a.lwait("k%d" % (m // 6))
        qk_mfma(0, m)
    for s in range(4):
        a("v_add_u32 v%d, 32768, v%d" % (aK[s], aK[s]))
    for qt in range(3):
        s0, s1 = Sb(0, 0, qt), Sb(0, 1, qt)
        mx, t = vT[0], vT[1]
        a("v_max3_f32 v%d, v%d, v%d, v%d" % (mx, s0, s0 + 1, s0 + 2))
        a("v_max3_f32 v%d, v%d, v%d, v%d" % (t, s0 + 3, s1, s1 + 1))
        a("v_max3_f32 v%d, v%d, v%d, v%d" % (mx, mx, s1 + 2, s1 + 3))
        a("v_max_f32 v%d, v%d, v%d" % (mx, mx, t))
        a("v_mov_b32 v%d, v%d" % (t, mx))
        a("v_permlane16_swap_b32 v%d, v%d" % (t, mx))
        a("v_max_f32 v%d, v%d, v%d" % (mx, mx, t))
        a("v_mov_b32 v%d, v%d" % (t, mx))
        a("v_permlane32_swap_b32 v%d, v%d" % (t, mx))
        a("v_max_f32 v%d, v%d, v%d" % (mx, mx, t))
        a("v_mul_f32 v%d, s%d, v%d" % (vMC[qt], sC, mx))
    a("s_mov_b32 s%d, 0" % sCur)
    a("s_mov_b32 s%d, 32768" % sNxt)
    a("s_mov_b32 s%d, 131072" % sPrev)
    a("s_mov_b32 s%d, 0" % sT)
    assert a.vm[-16:] == ["KV2"] * 8 + ["KV3"] * 8, a.vm

    rare_blocks = []
    def step(vmn, dma_items, uid, buf, qk=True, throttle_ok=True):
        a("s_waitcnt vmcnt(%d)" % vmn)
        a("s_barrier")
        if qk:
            for s in range(4):
                for kt in range(2): k_read(s, kt)
        V = lambda dts: [(lambda dt=dt, u=u: v_read(dt, u)) for dt in dts for u in range(2)]
        for f in V(range(0, 3)): f()
        def fma(qt, j):
            r = Sb(buf, j >> 2, qt) + (j & 3)
            a("v_fma_f32 v%d, v%d, s%d, -v%d" % (r, r, sC, vMC[qt]))
        def ex(qt, j):
            r = Sb(buf, j >> 2, qt) + (j & 3)
            a("v_exp_f32 v%d, v%d" % (r, r))
        def cv(qt, j):
            kt, h = j >> 1, j & 1
            s0 = Sb(buf, kt, qt) + 2 * h
            a("v_cvt_pk_bf16_f32 v%d, v%d, v%d" % (P(qt) + 2 * kt + h, s0, s0 + 1))
        FM = lambda qt: [(lambda j=j: fma(qt, j)) for j in range(8)]
        EX = lambda qt: [(lambda j=j: ex(qt, j)) for j in range(8)]
        CV = lambda qt: [(lambda j=j: cv(qt, j)) for j in range(4)]
        allr = [Sb(buf, j >> 2, qt) + (j & 3) for qt in range(3) for j in range(8)]
        MX = []
        t = vT[0:4]
        for k in range(4):
            r = allr[6 * k:6 * k + 6]
            MX.append(lambda k=k, r=r: a("v_max3_f32 v%d, v%d, v%d, v%d" % (t[k], r[0], r[1], r[2])))
            MX.append(lambda k=k, r=r: a("v_max3_f32 v%d, v%d, v%d, v%d" % (t[k], t[k], r[3], r[4])))
        r5 = [allr[6 * k + 5] for k in range(4)]
        MX.append(lambda: a("v_max3_f32 v%d, v%d, v%d, v%d" % (t[0], t[0], t[1], r5[0])))
        MX.append(lambda: a("v_max3_f32 v%d, v%d, v%d, v%d" % (t[2], t[2], t[3], r5[1])))
        MX.append(lambda: a("v_max3_f32 v%d, v%d, v%d, v%d" % (t[0], t[0], r5[2], r5[3])))
        MX.append(lambda: a("v_max_f32 v%d, v%d, v%d" % (t[0], t[0], t[2])))
        def chk():
            a("v_cmp_lt_f32 vcc, 0x%x, v%d" % (fbits(T_LOG2), t[0]))
            a("s_cbranch_vccnz L_rare_%s" % uid)
            a.lab("L_cont_%s" % uid)
        rare_blocks.append((uid, buf))
        def pv(g):
            qt, k = g // 9, g % 9
            if k == 0:
                a("v_mfma_f32_16x16x32_bf16 %s, %s, %s, %s" % (ar(La(qt)), ar(ONES), vr(P(qt)), ar(La(qt))))
            else:
                dt = k - 1
                a("v_mfma_f32_16x16x32_bf16 %s, %s, %s, %s" % (vr(O(dt, qt)), ar(Vf(dt)), vr(P(qt)), vr(O(dt, qt))))
        def slots():
            a("s_mov_b32 s%d, s%d" % (sPrev, sCur))
            a("s_mov_b32 s%d, s%d" % (sCur, sNxt))
            a("s_add_u32 s%d, s%d, 32768" % (sNxt, sNxt))
            a("s_cmp_eq_u32 s%d, 163840" % sNxt)
            a("s_cselect_b32 s%d, 0, s%d" % (sNxt, sNxt))
            a("s_sub_u32 s%d, s%d, s%d" % (sDK, sNxt, sCur))
            a("s_sub_u32 s%d, s%d, s%d" % (sDV, sCur, sPrev))
        ADDR = [(lambda r=r: a("v_add_u32 v%d, s%d, v%d" % (r, sDK, r))) for r in aK] + \
               [(lambda r=r: a("v_add_u32 v%d, s%d, v%d" % (r, sDV, r))) for r in aV]
        if qk:
            for f in FM(0): f()
            mf = [(lambda m=m: qk_mfma(buf ^ 1, m)) for m in range(24)] + [(lambda g=g: pv(g)) for g in range(27)]
            pre = {0: [lambda: a.lwait("k0")], 6: [lambda: a.lwait("k1")], 12: [lambda: a.lwait("k2")], 18: [lambda: a.lwait("k3")],
                   25: [lambda: a.lwait("v3")], 29: [lambda: a.lwait("v7")]}
            fill = {}
            spread(fill, FM(1) + FM(2), 0, 6)
            spread(fill, MX, 6, 10)
            spread(fill, V(range(3, 5)), 6, 10)
            fill.setdefault(9, []).append(chk)
            spread(fill, EX(0) + CV(0) + EX(1), 10, 18)
            spread(fill, V(range(5, 6)), 12, 14)
            spread(fill, V(range(6, 7)), 18, 20)
            spread(fill, CV(1) + EX(2), 18, 24)
            fill.setdefault(21, []).append(lambda: a.lwait("v0"))
            spread(fill, V(range(7, 8)), 21, 23)
            spread(fill, CV(2), 24, 27)
            d0, d1 = opts.get('dspread', (26, 42))
            TH = opts.get('throttle')
            if TH and throttle_ok:
                dma_items = [(lambda f=f: (a("s_waitcnt vmcnt(%d)" % (TH - 1)), f())) for f in dma_items]
            spread(fill, dma_items, d0, d1)
            fill.setdefault(max(41, d1 - 1), []).append(slots)
            spread(fill, ADDR, max(42, d1), 51) if d1 < 50 else spread(fill, ADDR, 50, 51)
            run_gaps(51, mf, pre, fill)
        else:
            for f in V(range(3, 7)): f()
            for f in FM(0) + FM(1) + FM(2) + MX: f()
            chk()
            a.lwait("v3")
            for f in V(range(7, 8)): f()
            for f in EX(0) + CV(0): f()
            mf = [(lambda g=g: pv(g)) for g in range(27)]
            pre = {1: [lambda: a.lwait("v3")], 5: [lambda: a.lwait("v7")]}
            fill = {}
            spread(fill, EX(1) + CV(1), 0, 8)
            spread(fill, EX(2) + CV(2), 9, 17)
            spread(fill, dma_items, 18, 26)
            run_gaps(27, mf, pre, fill)
        assert not a.lg, a.lg

    def rare(uid, buf):
        a.lab("L_rare_%s" % uid)
        for qt in range(3):
            s0, s1 = Sb(buf, 0, qt), Sb(buf, 1, qt)
            mx, t = vT[4], vT[5]
            a("v_max3_f32 v%d, v%d, v%d, v%d" % (mx, s0, s0 + 1, s0 + 2))
            a("v_max3_f32 v%d, v%d, v%d, v%d" % (t, s0 + 3, s1, s1 + 1))
            a("v_max3_f32 v%d, v%d, v%d, v%d" % (mx, mx, s1 + 2, s1 + 3))
            a("v_max3_f32 v%d, v%d, v%d, 0" % (mx, mx, t))
            a("v_mov_b32 v%d, v%d" % (t, mx))
            a("v_permlane16_swap_b32 v%d, v%d" % (t, mx))
            a("v_max_f32 v%d, v%d, v%d" % (mx, mx, t))
            a("v_mov_b32 v%d, v%d" % (t, mx))
            a("v_permlane32_swap_b32 v%d, v%d" % (t, mx))
            a("v_max_f32 v%d, v%d, v%d" % (mx, mx, t))
            a("v_add_f32 v%d, v%d, v%d" % (vMC[qt], vMC[qt], mx))
            for j in range(4):
                a("v_sub_f32 v%d, v%d, v%d" % (s0 + j, s0 + j, mx))
                a("v_sub_f32 v%d, v%d, v%d" % (s1 + j, s1 + j, mx))
            a("v_sub_f32 v%d, 0, v%d" % (t, mx))
            a("v_exp_f32 v%d, v%d" % (t, t))
            a("s_nop 0")
            for dt in range(8):
                for j in range(4):
                    a("v_mul_f32 v%d, v%d, v%d" % (O(dt, qt) + j, t, O(dt, qt) + j))
            for j in range(4):
                a("v_accvgpr_read_b32 v%d, a%d" % (mx, La(qt) + j))
                a("v_mul_f32 v%d, v%d, v%d" % (mx, t, mx))
                a("v_accvgpr_write_b32 a%d, v%d" % (La(qt) + j, mx))
        a("s_branch L_cont_%s" % uid)

    saved_vm = list(a.vm)
    a.lab("L_loop")
    step(16, KV_items("KVx", slot_sgpr=sPrev), "m0", 0)
    step(16, KV_items("KVx", slot_sgpr=sPrev), "m1", 1)
    a("s_add_u32 s%d, s%d, 2" % (sT, sT))
    a("s_cmp_lt_u32 s%d, 28" % sT)
    a("s_cbranch_scc1 L_loop")
    a.vm = ["KV29"] * 8 + ["KV30"] * 8 + ["KV31"] * 8

    USLOT = [65536, 98304, 131072]
    sL = sR0
    sBi = 71
    def pair_of(j):
        m = j >> 1
        if m == 0:
            a("s_mov_b32 s%d, s%d" % (sTmp2, sL))
        else:
            a("s_add_u32 s%d, s%d, %d" % (sTmp2, sBi, m - 1))
            a("s_cmp_ge_u32 s%d, 3" % sTmp2)
            a("s_cselect_b32 s3, 3, 0")
            a("s_sub_u32 s%d, s%d, s3" % (sTmp2, sTmp2))
            a("s_add_u32 s%d, s%d, s%d" % (sTmp2, sTmp2, sL))
            a("s_add_u32 s%d, s%d, 1" % (sTmp2, sTmp2))
            a("s_and_b32 s%d, s%d, 3" % (sTmp2, sTmp2))
    def U_items(j):
        def one(jj):
            if jj == 0:
                pair_of(j)
                a("s_and_b32 s3, s%d, 12" % sHP)
                a("s_add_u32 s%d, s%d, s3" % (sTmp2, sTmp2))
                a("s_lshl_b32 s%d, s%d, 1" % (sTmp2, sTmp2))
                a("s_add_u32 s%d, s%d, %d" % (sTmp2, sTmp2, j & 1))
                a("s_lshl_b32 s%d, s%d, 17" % (sCB, sTmp2))
                a("s_lshl_b32 s3, s%d, 15" % sW)
                a("s_add_u32 s%d, s%d, s3" % (sCB, sCB))
                a("s_lshl_b32 s3, s%d, 8" % sL)
                a("s_add_u32 s%d, s%d, s3" % (sCB, sCB))
            a("s_add_u32 m0, s%d, %d" % (sW8k, USLOT[j % 3] + jj * 1024))
            a("s_add_u32 s%d, s%d, %d" % (sTmp, sCB, 4 * jj * 1024))
            a.vmem("buffer_load_dwordx4 v%d, s[%d:%d], s%d offen%s lds" % (vWo[jj & 1], SWO, SWO + 3, sTmp, WOF), "U%d" % j)
        return [(lambda jj=jj: one(jj)) for jj in range(8)]
    sOB = 72
    def O_items(j):
        def one(k):
            if k == 0:
                pair_of(j)
                a("s_and_b32 s3, s%d, 12" % sHP)
                a("s_add_u32 s%d, s%d, s3" % (sTmp2, sTmp2))
                a("s_lshl_b32 s%d, s%d, 1" % (sTmp2, sTmp2))
                a("s_add_u32 s%d, s%d, %d" % (sTmp2, sTmp2, j & 1))
                a("s_lshl_b32 s3, s%d, 5" % sB)
                a("s_add_u32 s%d, s%d, s3" % (sTmp2, sTmp2))
                a("s_mul_i32 s%d, s%d, 24576" % (sOB, sTmp2))
                a("s_mul_i32 s3, s%d, 6144" % sW)
                a("s_add_u32 s%d, s%d, s3" % (sOB, sOB))
                if OBASE: a("s_add_u32 s%d, s%d, %d" % (sOB, sOB, OBASE))
                a("s_mul_i32 s%d, s%d, 6144" % (sM0, sW))
            a("s_add_u32 m0, s%d, %d" % (sM0, (j & 1) * 24576 + k * 1024))
            a("s_add_u32 s%d, s%d, %d" % (sTmp, sOB, k * 1024))
            a.vmem("buffer_load_dwordx4 v%d, s[%d:%d], s%d offen%s lds" % (vL16, SWS, SWS + 3, sTmp, PLD), "O%d" % j)
        return [(lambda k=k: one(k)) for k in range(6)]
    def nonce_load():
        a("v_mov_b32 v4, 0")
        a.vmem("buffer_load_dwordx2 v[2:3], v4, s[%d:%d], 0 offen sc1" % (SDBG, SDBG + 3), "N")
    a("s_and_b32 s%d, s%d, 3" % (sL, sHP))
    a("s_and_b32 s%d, s%d, 7" % (sBi, sB))
    a("s_cmp_ge_u32 s%d, 6" % sBi)
    a("s_cselect_b32 s3, 6, 0")
    a("s_sub_u32 s%d, s%d, s3" % (sBi, sBi))
    a("s_cmp_ge_u32 s%d, 3" % sBi)
    a("s_cselect_b32 s3, 3, 0")
    a("s_sub_u32 s%d, s%d, s3" % (sBi, sBi))
    step(a.vcount("KV29"), U_items(0), "t0", 0, throttle_ok=False)
    step(a.vcount("KV30"), U_items(1), "t1", 1, throttle_ok=False)
    step(a.vcount("KV31"), U_items(2), "t2", 0, throttle_ok=False)
    step(len(a.vm), [nonce_load], "t3", 1, qk=False)
    stamp(5)

    F = lambda s, qt: 52 + (s * 3 + qt) * 4
    for qt in range(3):
        a("v_accvgpr_read_b32 v%d, a%d" % (vT[6 + qt], La(qt)))
    for qt in range(3):
        a("v_rcp_f32 v%d, v%d" % (vT[6 + qt], vT[6 + qt]))
    a("s_lshl_b32 s%d, s%d, 5" % (sPart, sB))
    a("s_add_u32 s%d, s%d, s%d" % (sPart, sPart, sH0))
    a("s_add_u32 s%d, s%d, s%d" % (sPart, sPart, sP))
    a("s_mul_i32 s%d, s%d, 6" % (sPart, sPart))
    a("s_mul_i32 s3, s%d, 3" % sQH)
    a("s_add_u32 s%d, s%d, s3" % (sPart, sPart))
    a("s_lshl_b32 s%d, s%d, 12" % (sPart, sPart))
    if OBASE: a("s_add_u32 s%d, s%d, %d" % (sPart, sPart, OBASE))
    a("s_barrier")
    a("s_mul_i32 s3, s%d, 12288" % sW)
    a("v_add_u32 v4, s3, v%d" % vL16)
    for qt in range(3):
        for s in range(4):
            d = F(s, qt)
            for ab in range(2):
                o = O(2 * s + ab, qt)
                for j in range(0, 4, 2):
                    a("v_pk_mul_f32 v[%d:%d], v[%d:%d], v[%d:%d] op_sel_hi:[1,0]" % (o + j, o + j + 1, o + j, o + j + 1, vT[6 + qt] & ~1, (vT[6 + qt] & ~1) + 1)) if False else None
                for j in range(4):
                    a("v_mul_f32 v%d, v%d, v%d" % (o + j, vT[6 + qt], o + j))
                a("v_cvt_pk_bf16_f32 v%d, v%d, v%d" % (d + 2 * ab, o, o + 1))
                a("v_cvt_pk_bf16_f32 v%d, v%d, v%d" % (d + 2 * ab + 1, o + 2, o + 3))
            a("s_add_u32 s%d, s%d, %d" % (sTmp, sPart, qt * 4096))
            a.vmem("buffer_store_dwordx4 %s, v%d, s[%d:%d], s%d offen offset:%d%s" % (vr(d), vL16, SWS, SWS + 3, sTmp, s * 1024, PST), "OS")
            a.lds("ds_write_b128 v4, %s offset:%d" % (vr(d), (s * 3 + qt) * 1024), "ex")
    a.lwait_all()
    a("s_barrier")
    Bo = lambda ks, qt: 152 + (ks * 3 + qt) * 4
    a("s_mul_i32 s3, s%d, 12288" % sQH)
    a("v_add_u32 v4, s3, v%d" % vL16)
    n = 0
    for pp in range(2):
        for s in range(4):
            for qt in range(3):
                if n == 12: a.lwait_all()
                a.lds("ds_read_b128 %s, v4 offset:%d" % (vr(Bo(4 * pp + s, qt)), pp * 24576 + (s * 3 + qt) * 1024), "bo")
                n += 1
    aO = [[34 + 4 * bb + nt for nt in range(4)] for bb in range(3)]
    a("s_lshl_b32 s3, s%d, 7" % sP)
    a("v_xor_b32 v%d, s3, v0" % aO[0][0])
    for nt in range(1, 4):
        a("v_xor_b32 v%d, %d, v%d" % (aO[0][nt], nt << 5, aO[0][0]))
    for bb in (1, 2):
        for nt in range(4):
            a("v_add_u32 v%d, %d, v%d" % (aO[bb][nt], 65536 * bb, aO[0][nt]))
    vOB = 46
    a("s_mul_i32 s3, s%d, 12288" % sQH)
    a("v_add_u32 v%d, s3, v%d" % (vOB, vL16))
    a.lwait_all()
    stamp(6)

    ACC = lambda nt, qt: 52 + (nt * 3 + qt) * 4
    Af = lambda buf, nt: 64 + buf * 16 + nt * 4
    Bf = lambda buf, qt: 100 + buf * 12 + qt * 4
    def a_read(j, kl, nt, u):
        base = USLOT[j % 3] + kl * 8192
        bb, off = base >> 16, base & 0xffff
        a.lds("ds_read_b64_tr_b16 %s, v%d offset:%d" % (ar(Af(kl & 1, nt) + 2 * u, 2), aO[bb][nt], off + u * 4096), "a%d_%d" % (j, kl))
    def b_read(j, kl, qt):
        a.lds("ds_read_b128 %s, v%d offset:%d" % (vr(Bf(kl & 1, qt)), vOB, (j & 1) * 24576 + (qt * 4 + kl) * 1024), "a%d_%d" % (j, kl))
    def AB_items(j, kl):
        it = []
        if j >= 2: it += [(lambda qt=qt: b_read(j, kl, qt)) for qt in range(3)]
        if j not in RES: it += [(lambda nt=nt, u=u: a_read(j, kl, nt, u)) for nt in range(4) for u in range(2)]
        return it
    RES = {2: 128, 3: 192} if opts.get('pull', True) else {}
    def pull(j):
        n = 0
        for kl in range(4):
            base = USLOT[j % 3] + kl * 8192
            bb, off = base >> 16, base & 0xffff
            for nt in range(4):
                for u in range(2):
                    if len(a.lg) >= 14: a.lwait(a.lg[7])
                    a.lds("ds_read_b64_tr_b16 %s, v%d offset:%d" % (ar(RES[j] + (kl * 4 + nt) * 4 + 2 * u, 2), aO[bb][nt], off + u * 4096), "p%d_%d" % (j, n))
                    n += 1

    def publish(own_off_code, uid):
        a("s_cmp_eq_u32 s%d, 0" % sW)
        a("s_cbranch_scc0 L_pskip_%s" % uid)
        a("s_mov_b32 s%d, 0" % sT)
        a.lab("L_nonce_%s" % uid)
        a("s_add_u32 s%d, s%d, 1" % (sT, sT))
        a("s_cmp_gt_u32 s%d, 0x40000" % sT)
        a("s_cbranch_scc1 L_pskip_%s" % uid)
        a("v_or_b32 v4, v2, v3")
        a("v_cmp_eq_u32 vcc, 0, v4")
        a("s_cbranch_vccz L_nok_%s" % uid)
        a("s_sleep 2")
        a("v_mov_b32 v4, 0")
        a("buffer_load_dwordx2 v[2:3], v4, s[%d:%d], 0 offen sc1" % (SDBG, SDBG + 3))
        a("s_waitcnt vmcnt(0)")
        a("s_branch L_nonce_%s" % uid)
        a.lab("L_nok_%s" % uid)
        own_off_code()
        a("v_mov_b32 v4, 0")
        a("buffer_store_dwordx2 v[2:3], v4, s[%d:%d], s%d offen sc1" % (SWS, SWS + 3, sTmp))
        a.lab("L_pskip_%s" % uid)
    def wait_flags(poll_off_code, nfl, uid):
        a("s_cmp_eq_u32 s%d, 0" % sW)
        a("s_cbranch_scc0 L_skip_%s" % uid)
        a("s_mov_b32 s%d, 0" % sT)
        poll_off_code()
        a("v_and_b32 v5, %d, v1" % (nfl - 1))
        a("v_lshlrev_b32 v5, 3, v5")
        a("buffer_load_dwordx2 v[6:7], v5, s[%d:%d], s%d offen sc1" % (SWS, SWS + 3, sTmp))
        a.lab("L_poll_%s" % uid)
        a("s_add_u32 s%d, s%d, 1" % (sT, sT))
        a("s_cmp_gt_u32 s%d, 0x40000" % sT)
        a("s_cbranch_scc1 L_pdone_%s" % uid)
        a("buffer_load_dwordx2 v[48:49], v5, s[%d:%d], s%d offen sc1" % (SWS, SWS + 3, sTmp))
        a("s_waitcnt vmcnt(1)")
        a("v_xor_b32 v6, v6, v2")
        a("v_xor_b32 v7, v7, v3")
        a("v_or_b32 v6, v6, v7")
        a("v_cmp_ne_u32 vcc, 0, v6")
        a("s_cbranch_vccz L_pdone_%s" % uid)
        a("buffer_load_dwordx2 v[6:7], v5, s[%d:%d], s%d offen sc1" % (SWS, SWS + 3, sTmp))
        a("s_waitcnt vmcnt(1)")
        a("v_xor_b32 v48, v48, v2")
        a("v_xor_b32 v49, v49, v3")
        a("v_or_b32 v48, v48, v49")
        a("v_cmp_ne_u32 vcc, 0, v48")
        a("s_cbranch_vccnz L_poll_%s" % uid)
        a.lab("L_pdone_%s" % uid)
        a("s_waitcnt vmcnt(0)")
        a.lab("L_skip_%s" % uid)
        a("s_barrier")

    def head(j, nxt_ready):
        mf = []; pre = {}; fill = {}
        for kl in range(4):
            for nt in range(4):
                for qt in range(3):
                    c = "0" if (j == 0 and kl == 0) else vr(ACC(nt, qt))
                    bsrc = vr(Bo(4 * j + kl, qt)) if j < 2 else vr(Bf(kl & 1, qt))
                    asrc = ar(RES[j] + (kl * 4 + nt) * 4) if j in RES else ar(Af(kl & 1, nt))
                    mf.append(lambda kl=kl, nt=nt, qt=qt, c=c, bsrc=bsrc, asrc=asrc: a("v_mfma_f32_16x16x32_bf16 %s, %s, %s, %s" % (vr(ACC(nt, qt)), asrc, bsrc, c)))
            pre[12 * kl] = [lambda kl=kl: a.lwait("a%d_%d" % (j, kl))]
            if kl < 3 and AB_items(j, kl + 1): spread(fill, AB_items(j, kl + 1), 12 * kl + 1, 12 * kl + 10)
        return mf, pre, fill

    a.vwait("U0")
    a("s_barrier")
    for f in AB_items(0, 0): f()
    mf, pre, fill = head(0, True)
    def bar0():
        a.vwait("U1"); a("s_barrier")
    pre[36].append(bar0)
    spread(fill, AB_items(1, 0), 37, 46)
    run_gaps(48, mf, pre, fill)
    mf, pre, fill = head(1, False)
    spread(fill, U_items(3), 1, 34)
    run_gaps(48, mf, pre, fill)
    a.vwait("OS")
    a.lwait_all()
    a("s_barrier")
    stamp(7)
    def ownA():
        a("s_lshl_b32 s%d, s%d, 7" % (sTmp, sB))
        a("s_lshl_b32 s3, s%d, 3" % sHP)
        a("s_add_u32 s%d, s%d, s3" % (sTmp, sTmp))
        a("s_add_u32 s%d, s%d, %d" % (sTmp, sTmp, FLAGB))
    def pollA():
        a("s_lshl_b32 s%d, s%d, 7" % (sTmp, sB))
        a("s_and_b32 s3, s%d, 12" % sHP)
        a("s_lshl_b32 s3, s3, 3")
        a("s_add_u32 s%d, s%d, s3" % (sTmp, sTmp))
        a("s_add_u32 s%d, s%d, %d" % (sTmp, sTmp, FLAGB))
    if opts.get('tdiag') == 1: stamp(1, True)
    publish(ownA, "A")
    if RES:
        for f in U_items(4): f()
        pull(2)
        a.vwait("U3")
        a.lwait_all()
        a("s_barrier")
        for f in U_items(5): f()
        pull(3)
        a.lwait_all()
        a("s_barrier")
        if not opts.get('u6late', True):
            for f in U_items(6): f()
    wait_flags(pollA, 4, "A")
    stamp(8)
    if opts.get('tdiag') == 1: stamp(2, True)
    EARLY = opts.get('oearly', True)
    for f in O_items(2): f()
    o3 = O_items(3)
    n3 = opts.get('o3_first', 6)
    for f in o3[:n3]: f()
    late_first = o3[n3:] + ([] if RES else U_items(4))
    a.vwait("O2")
    a("s_barrier")
    if opts.get('tdiag') == 1: stamp(3, True)
    for f in AB_items(2, 0): f()
    for j in range(2, 8):
        mf, pre, fill = head(j, True)
        dma = []; dma_late = []
        if j < 7:
            def nb(j=j):
                a.vwait("O%d" % (j + 1))
                a.vwait("U%d" % (j + 1))
                a("s_barrier")
            pre[36].append(nb)
            spread(fill, AB_items(j + 1, 0), 37, 47)
        if j == 2: dma += late_first
        if EARLY and j + 2 <= 7: dma_late += O_items(j + 2)
        if j >= 3:
            if not EARLY and j + 1 <= 7: dma += O_items(j + 1)
            if RES:
                if j == 5: dma += U_items(7)
            elif j + 2 <= 7: dma += U_items(j + 2)
        if RES and j == 2 and opts.get('u6late', True): dma += U_items(6)
        if dma: spread(fill, dma, 0, 24)
        if dma_late: spread(fill, dma_late, 37, 48)
        run_gaps(48, mf, pre, fill)
        if opts.get('tdiag') == 1: stamp(2 + j, True)
    stamp(9)
    if opts.get('tdiag') == 2: stamp(1, True)
    a("s_lshl_b32 s%d, s%d, 2" % (sPart, sB))
    a("s_add_u32 s%d, s%d, s%d" % (sPart, sPart, sL))
    a("s_lshl_b32 s%d, s%d, 2" % (sPart, sPart))
    a("s_lshr_b32 s3, s%d, 2" % sHP)
    a("s_add_u32 s%d, s%d, s3" % (sPart, sPart))
    a("s_mul_i32 s%d, s%d, 24" % (sPart, sPart))
    a("s_mul_i32 s3, s%d, 12" % sP)
    a("s_add_u32 s%d, s%d, s3" % (sPart, sPart))
    a("s_mul_i32 s3, s%d, 3" % sQH)
    a("s_add_u32 s%d, s%d, s3" % (sPart, sPart))
    a("s_lshl_b32 s%d, s%d, 10" % (sPart, sPart))
    a("s_add_u32 s%d, s%d, %d" % (sPart, sPart, P2BASE))
    k = 0
    for i in range(2):
        for qt in range(3):
            d = 100 + 4 * k
            for ab in range(2):
                o = ACC(2 * i + ab, qt)
                a("v_cvt_pk_bf16_f32 v%d, v%d, v%d" % (d + 2 * ab, o, o + 1))
                a("v_cvt_pk_bf16_f32 v%d, v%d, v%d" % (d + 2 * ab + 1, o + 2, o + 3))
            a("s_add_u32 s%d, s%d, %d" % (sTmp, sPart, (6 * i + qt) * 1024))
            a.vmem("buffer_store_dwordx4 %s, v%d, s[%d:%d], s%d offen%s" % (vr(d), vL16, SWS, SWS + 3, sTmp, PST), "P")
            k += 1
    if opts.get('tdiag') == 2: stamp(2, True)
    a("s_waitcnt vmcnt(0)")
    a.vm = []
    if opts.get('tdiag') == 2: stamp(3, True)
    a("s_barrier")
    if opts.get('tdiag') == 2: stamp(4, True)
    def ownB():
        a("s_lshl_b32 s%d, s%d, 2" % (sTmp, sB))
        a("s_add_u32 s%d, s%d, s%d" % (sTmp, sTmp, sL))
        a("s_lshl_b32 s%d, s%d, 7" % (sTmp, sTmp))
        a("s_lshr_b32 s3, s%d, 2" % sHP)
        a("s_lshl_b32 s3, s3, 3")
        a("s_add_u32 s%d, s%d, s3" % (sTmp, sTmp))
        a("s_add_u32 s%d, s%d, %d" % (sTmp, sTmp, FLAGB + 4096))
    def pollB():
        a("s_lshl_b32 s%d, s%d, 2" % (sTmp, sB))
        a("s_add_u32 s%d, s%d, s%d" % (sTmp, sTmp, sL))
        a("s_lshl_b32 s%d, s%d, 7" % (sTmp, sTmp))
        a("s_add_u32 s%d, s%d, %d" % (sTmp, sTmp, FLAGB + 4096))
    publish(ownB, "B")
    wait_flags(pollB, 4, "B")
    if opts.get('tdiag') == 2: stamp(5, True)
    a("s_lshl_b32 s%d, s%d, 2" % (sPart, sB))
    a("s_add_u32 s%d, s%d, s%d" % (sPart, sPart, sL))
    a("s_mul_i32 s%d, s%d, 96" % (sPart, sPart))
    a("s_lshr_b32 s3, s%d, 2" % sHP)
    a("s_mul_i32 s3, s3, 6")
    a("s_add_u32 s%d, s%d, s3" % (sPart, sPart))
    a("s_add_u32 s%d, s%d, s%d" % (sPart, sPart, sW))
    a("s_lshl_b32 s%d, s%d, 10" % (sPart, sPart))
    a("s_add_u32 s%d, s%d, %d" % (sPart, sPart, P2BASE))
    a("v_and_b32 v5, 15, v1")
    a("v_lshrrev_b32 v6, 4, v1")
    a("v_lshlrev_b32 v6, 3, v6")
    a("v_lshl_add_u32 v5, v5, 10, v6")
    a("s_mul_i32 s%d, s%d, %d" % (sOB, sB, 96 * 1024))
    a("s_lshl_b32 s3, s%d, 8" % sL)
    a("s_add_u32 s%d, s%d, s3" % (sOB, sOB))
    a("s_lshr_b32 s3, s%d, 2" % sHP)
    a("s_lshl_b32 s3, s3, 6")
    a("s_add_u32 s%d, s%d, s3" % (sOB, sOB))
    a("s_lshl_b32 s3, s%d, 14" % sW)
    a("s_add_u32 s%d, s%d, s3" % (sOB, sOB))
    R = lambda k, i: 64 + (k * 4 + i) * 4
    def fin_loads(k):
        for i in range(4):
            a("s_add_u32 s%d, s%d, %d" % (sTmp, sPart, (i * 24 + 4 * k) * 1024))
            a.vmem("buffer_load_dwordx4 %s, v%d, s[%d:%d], s%d offen%s" % (vr(R(k, i)), vL16, SWS, SWS + 3, sTmp, PLD), "R%d_%d" % (k, i))
    def fin_sum(k):
        AC = 160 + 8 * k
        for i in range(4):
            a.vwait("R%d_%d" % (k, i))
            for d in range(4):
                x = R(k, i) + d
                if i == 0:
                    a("v_lshlrev_b32 v%d, 16, v%d" % (AC + 2 * d, x))
                    a("v_and_b32 v%d, 0xffff0000, v%d" % (AC + 2 * d + 1, x))
                else:
                    a("v_lshlrev_b32 v%d, 16, v%d" % (vT[0], x))
                    a("v_and_b32 v%d, 0xffff0000, v%d" % (vT[1], x))
                    a("v_add_f32 v%d, v%d, v%d" % (AC + 2 * d, AC + 2 * d, vT[0]))
                    a("v_add_f32 v%d, v%d, v%d" % (AC + 2 * d + 1, AC + 2 * d + 1, vT[1]))
        for ab in range(2):
            a("v_cvt_pk_bf16_f32 v%d, v%d, v%d" % (AC + 4 * ab, AC + 4 * ab, AC + 4 * ab + 1))
            a("v_cvt_pk_bf16_f32 v%d, v%d, v%d" % (AC + 4 * ab + 1, AC + 4 * ab + 2, AC + 4 * ab + 3))
            a("s_add_u32 s%d, s%d, %d" % (sTmp, sOB, k * 4 * 16384 + ab * 32))
            a("buffer_store_dwordx2 %s, v5, s[%d:%d], s%d offen" % (vr(AC + 4 * ab, 2), SOUT, SOUT + 3, sTmp))
    a("s_cmp_lt_u32 s%d, 2" % sW)
    a("s_cbranch_scc1 L_fin2")
    vm_save = list(a.vm)
    fin_loads(0)
    if opts.get('tdiag') == 2: stamp(6, True)
    fin_sum(0)
    a("s_branch L_fin_done")
    a.lab("L_fin2")
    a.vm = list(vm_save)
    fin_loads(0); fin_loads(1)
    if opts.get('tdiag') == 2: stamp(6, True)
    fin_sum(0); fin_sum(1)
    a.lab("L_fin_done")
    a.vm = []
    if opts.get('tdiag') == 2: stamp(7, True)
    if ST:
        a("s_waitcnt vmcnt(0)")
        stamp(10)
        a("s_cmp_eq_u32 s%d, 0" % sW)
        a("s_cbranch_scc0 L_st")
        a("s_mul_i32 s3, s2, %d" % (NSTAMP * 8))
        a("s_add_u32 s3, s3, 0x%x" % STAMPB)
        a("v_mov_b32 v2, 0")
        a("v_cmp_eq_u32 vcc, 0, v1")
        a("s_and_saveexec_b64 s[72:73], vcc")
        for i in range(11):
            a("v_mov_b32 v4, s%d" % (76 + 2 * i))
            a("v_mov_b32 v5, s%d" % (77 + 2 * i))
            a("buffer_store_dwordx2 v[4:5], v2, s[%d:%d], s3 offen offset:%d" % (SWS, SWS + 3, i * 8))
            a("s_waitcnt vmcnt(0)")
        if opts.get('dbgstamps'):
            for k, idx in enumerate(opts['dbgstamps']):
                a("v_mov_b32 v4, s%d" % (76 + 2 * idx))
                a("v_not_b32 v5, v4")
                a("buffer_atomic_umax v4, v2, s[%d:%d], 0 offen offset:%d" % (SDBG, SDBG + 3, 8 + 8 * k))
                a("buffer_atomic_umax v5, v2, s[%d:%d], 0 offen offset:%d" % (SDBG, SDBG + 3, 12 + 8 * k))
                a("s_waitcnt vmcnt(0)")
        a("s_mov_b64 exec, s[72:73]")
        a.lab("L_st")
    a("s_endpgm")
    for uid, buf in rare_blocks:
        rare(uid, buf)
    a.lab("L_end")
    a("s_endpgm")
    return a

def build(opts, verbose=False):
    k = gen(dict(opts))
    txt = header(["grid=(256,1,1) block=(256,1,1) lds=163840"], opts.get('comment', ""))
    lines, n = hazard.fix(k.lines, verbose, "g")
    errs = hazard.check_counters(lines, "g")
    for e in errs[:20]: print("ERR", e)
    if verbose: print("nops inserted:", n, "lines:", len(lines))
    txt += "\n".join(lines) + "\n"
    e = hazard.lint_srd(txt)
    assert not e, e
    txt += descriptor(KNAME, 512, 100, 256)
    return txt

if __name__ == "__main__":
    v = "-v" in sys.argv
    base = dict(touch=False, dspread=(2, 46), throttle=5, tlb=True, rot2=True, qmap2=True, qm2_burst=6)
    open("h9.s", "w").write(build(dict(base), v))
    open("h9_st.s", "w").write(build(dict(base, stamps=True)))
    open("h9_t2.s", "w").write(build(dict(base, stamps=True, tdiag=2)))
```

```python
import sys, math, struct
from asmlib import *
import hazard

C_SCALE = math.log2(math.e) / math.sqrt(128.0)
def fbits(x): return struct.unpack("<I", struct.pack("<f", x))[0]
PBASE = 0x0
OBASE = 0x0
P2BASE = 0x1000000
FLAGB = 0x2000000
STAMPB = 0x1F000000
NSTAMP = 12

class G(Asm):
    def __init__(self):
        super().__init__()
        self.vm = []; self.lg = []
    def vmem(self, s, tag):
        self(s); self.vm.append(tag)
    def vcount(self, tag):
        idx = max(i for i, t in enumerate(self.vm) if t == tag)
        n = len(self.vm) - 1 - idx
        self.vm = self.vm[idx + 1:]
        assert n <= 63
        return n
    def vwait(self, tag):
        if tag not in self.vm: return
        self("s_waitcnt vmcnt(%d)" % self.vcount(tag))
    def lds(self, s, tag):
        self(s); self.lg.append(tag)
        assert len(self.lg) <= 15, ("lds overflow", s)
    def lwait(self, tag):
        if tag not in self.lg: return
        idx = max(i for i, t in enumerate(self.lg) if t == tag)
        n = len(self.lg) - 1 - idx
        self.lg = self.lg[idx + 1:]
        self("s_waitcnt lgkmcnt(%d)" % n)
    def lwait_all(self):
        if self.lg:
            self("s_waitcnt lgkmcnt(0)"); self.lg = []

def run_gaps(n, mf, pre, fill):
    for g in range(n):
        for f in pre.get(g, []): f()
        mf[g]()
        for f in fill.get(g, []): f()
def spread(fill, items, g0, g1):
    n = len(items); m = g1 - g0
    for k, it in enumerate(items):
        g = g0 + (k * m) // n
        fill.setdefault(g, []).append(it)

def gen(opts):
    global OBASE, P2BASE, FLAGB
    wsb = opts.get('wsbase', 0)
    OBASE = wsb; P2BASE = wsb + 0x1000000; FLAGB = wsb + 0x1800000
    a = G()
    ST = opts.get('stamps')
    def cstamp(idx):
        a("s_memtime s[%d:%d]" % (76 + 2 * idx, 77 + 2 * idx))
    def stamp(idx, o=False):
        if not ST: return
        if opts.get('tdiag') and not o and idx not in (0, 10): return
        if (opts.get('odiag') or opts.get('q_stamps') or opts.get('s_stamps') or opts.get('qd') is not None) and not o and idx not in (0, 1, 10): return
        a("s_memrealtime s[%d:%d]" % (76 + 2 * idx, 77 + 2 * idx))
        a("s_waitcnt lgkmcnt(0)")
        a.lg = []
    NT = " nt" if opts.get('nt', True) else ""
    WNT = opts.get('wq_flags', ""); XNT = opts.get('x_flags', ""); WOF = opts.get('wo_flags', "")
    PST = opts.get('p_st', " sc1"); PLD = opts.get('p_ld', " sc1")
    ROT = opts.get('rot', True)
    T_LOG2 = opts.get('T', 8.0)
    vKd = [10, 11, 12, 13]; vVd = [14, 15]; vWd = 16; vXd = [17, 9]; aX = [7, 8]
    aK = [18, 19, 20, 21]; aV = list(range(22, 30)); aW = list(range(112, 120)); vWd2 = 33
    vMC = [34, 35, 36]; vT = list(range(37, 46))
    vWo = [30, 31]; vL16 = 32
    Sb = lambda buf, kt, qt: 52 + 24 * buf + (kt * 3 + qt) * 4
    P = lambda qt: 100 + 4 * qt
    O = lambda dt, qt: 152 + (dt * 3 + qt) * 4
    Xf = lambda ks, qt: 52 + (ks * 3 + qt) * 4
    Qa = lambda s, qt: (s * 3 + qt) * 4
    La = lambda qt: 48 + 4 * qt
    ONES = 60
    KPRE = opts.get('kpre', False)
    Kf = lambda s, kt, kb=0: (64 if kb == 0 else 128) + (s * 2 + kt) * 4
    Vf = lambda dt: 96 + 4 * dt
    Wf = lambda buf, dt: 128 + buf * 32 + dt * 4
    vr = lambda b, n=4: "v[%d:%d]" % (b, b + n - 1)
    ar = lambda b, n=4: "a[%d:%d]" % (b, b + n - 1)
    sW = 40; sH0 = 41; sB = 42; sQH = 43; sKV = 44; sCur = 45; sPrev = 46; sDK = 47; sWoff = 48; sT = 49
    sXo = 50; sP = 51; sC0 = 52; sWq = 53; sC = 54; sTmp = 55; sTmp2 = 56; sDV = 57
    sHP = 58; sW8k = 59; sW3k = 60; sCh = 61; sChX = 62; sWoB = 63; sR0 = 64; sPart = 65; sN = 66
    sNxt = 68; sCB = 69; sM0 = 70; sKVv = 73; sSK = 74; sSV = 75
    SX, SK, SV, SWQ, SWS, SWO, SOUT, SDBG = 20, 24, 28, 32, 36, 4, 8, 12

    a(kernel_begin(KNAME))
    a("s_cmp_ge_u32 s2, 256")
    a("s_cbranch_scc1 L_end")
    stamp(0)
    if opts.get('burn'):
        a("s_mov_b32 s3, 0")
        a.lab("L_burn")
        for g in range(16):
            r = 100 + 4 * (g % 6)
            a("v_mfma_f32_16x16x32_bf16 v[%d:%d], v[140:143], v[144:147], v[%d:%d]" % (r, r + 3, r, r + 3))
        a("s_add_u32 s3, s3, 1")
        a("s_cmp_lt_u32 s3, %d" % opts['burn'])
        a("s_cbranch_scc1 L_burn")
    a("s_load_dwordx16 s[52:67], s[0:1], 0")
    a("v_lshrrev_b32 v2, 6, v0")
    a("v_and_b32 v1, 63, v0")
    a("v_readfirstlane_b32 s%d, v2" % sW)
    a("v_lshrrev_b32 v2, 4, v1")
    a("v_and_b32 v3, 15, v1")
    for kk, reg in ((0, vWd), (1, vWd2)):
        a("v_add_u32 v4, %d, v2" % (4 * kk))
        a("v_lshlrev_b32 v4, 1, v4")
        a("v_xor_b32 v4, v3, v4")
        a("v_lshlrev_b32 v4, 4, v4")
        a("v_lshl_add_u32 v%d, v2, 13, v4" % reg)
    a("v_and_b32 v5, 7, v1")
    a("v_lshrrev_b32 v6, 3, v1")
    for jp in range(2):
        a("s_add_u32 s3, s%d, %d" % (sW, jp))
        a("s_and_b32 s3, s3, 1")
        a("s_lshl_b32 s3, s3, 2")
        a("v_add_u32 v4, s3, v2")
        a("v_xor_b32 v4, v5, v4")
        a("v_lshlrev_b32 v4, 4, v4")
        a("v_lshl_add_u32 v%d, v6, 10, v4" % vXd[jp])
    a("s_and_b32 s16, s2, 7")
    a("s_lshr_b32 s17, s2, 3")
    a("s_and_b32 s18, s16, 3")
    a("s_lshl_b32 s18, s18, 2")
    a("s_and_b32 s3, s17, 3")
    a("s_add_u32 s18, s18, s3")
    a("s_lshl_b32 s%d, s18, 1" % sH0)
    a("s_lshr_b32 s%d, s16, 2" % sB)
    a("s_lshl_b32 s%d, s%d, 3" % (sB, sB))
    a("s_lshr_b32 s17, s17, 2")
    a("s_add_u32 s%d, s%d, s17" % (sB, sB))
    if ROT:
        if opts.get('rot2'):
            a("s_add_u32 s3, s3, s17")
            a("s_and_b32 s3, s3, 3")
            a("s_lshl_b32 s19, s3, 1")
        else:
            a("s_lshl_b32 s3, s3, 1")
            a("s_add_u32 s3, s3, s17")
            a("s_and_b32 s19, s3, 7")
        a("s_and_b32 s17, s17, 3")
    else:
        a("s_mov_b32 s19, 0")
        a("s_mov_b32 s17, 0")
    a("s_lshr_b32 s%d, s%d, 1" % (sP, sW))
    a("s_and_b32 s%d, s%d, 1" % (sQH, sW))
    a("s_mul_i32 s%d, s%d, 96" % (sXo, sB))
    a("s_mul_i32 s3, s%d, 24" % sW)
    a("s_add_u32 s%d, s%d, s3" % (sXo, sXo))
    a("s_lshl_b32 s%d, s%d, 10" % (sXo, sXo))
    a("s_waitcnt lgkmcnt(0)")
    if opts.get('s_stamps'): stamp(2, True)
    srd(a, SWQ, 58, 0x400000)
    srd(a, SX, 52, 16 * 96 * 512 * 2)
    srd(a, SK, 54, 0x8000000)
    srd(a, SV, 56, 0x8000000)
    srd(a, SWO, 60, 0x400000)
    srd(a, SOUT, 62, 16 * 96 * 512 * 2)
    srd(a, SDBG, 64, 256)
    srd(a, SWS, 66, 0x20000000)
    a("s_mov_b32 s%d, s18" % sHP)
    a("s_mov_b32 s%d, s19" % sC0)
    a("s_mov_b32 s%d, s17" % sR0)
    a("s_lshl_b32 s%d, s%d, 18" % (sWq, sQH))
    a("s_add_u32 s3, s%d, s%d" % (sH0, sP))
    a("s_lshl_b32 s3, s3, 8")
    a("s_add_u32 s%d, s%d, s3" % (sWq, sWq))
    a("s_lshl_b32 s%d, s%d, 13" % (sW8k, sW))
    a("s_mul_i32 s%d, s%d, 3072" % (sW3k, sW))

    CB = [28672, 73728, 118784]
    QM2 = opts.get('qmap2', False)
    def cbase(i):
        if QM2: return CB[[0, 1, 2, 0, 1, 2, 1, 2][i]]
        return CB[(i + 1) % 3]
    def C_items(i):
        items = []
        def head():
            a("s_add_u32 s%d, s%d, %d" % (sCh, sC0, 0 if opts.get('qsame') else i))
            a("s_and_b32 s%d, s%d, 7" % (sCh, sCh))
            a("s_lshl_b32 s%d, s%d, 7" % (sChX, sCh))
            a("s_add_u32 s%d, s%d, s%d" % (sChX, sChX, sXo))
            a("s_lshl_b32 s%d, s%d, 19" % (sCh, sCh))
            a("s_add_u32 s%d, s%d, s%d" % (sCh, sCh, sWq))
        def wq(jj):
            if jj == 0: head()
            a("s_add_u32 m0, s%d, %d" % (sW8k, cbase(i) + jj * 1024))
            a("s_add_u32 s%d, s%d, %d" % (sTmp, sCh, 4 * jj * 8192))
            a.vmem("buffer_load_dwordx4 v%d, s[%d:%d], s%d offen%s lds" % (vWd2 if (jj >> 1) & 1 else vWd, SWQ, SWQ + 3, sTmp, WNT), "C%d" % i)
        def xx(j):
            a("s_add_u32 m0, s%d, %d" % (sW3k, cbase(i) + 32768 + j * 1024))
            a("s_add_u32 s%d, s%d, %d" % (sTmp, sChX, 8 * j * 1024))
            a.vmem("buffer_load_dwordx4 v%d, s[%d:%d], s%d offen%s lds" % (vXd[j & 1], SX, SX + 3, sTmp, XNT), "C%d" % i)
        for jj in range(8): items.append(lambda jj=jj: wq(jj))
        for j in range(3): items.append(lambda j=j: xx(j))
        return items
    for it in C_items(0): it()
    if opts.get('s_stamps'): stamp(3, True)
    if not opts.get('c1late', True):
        for it in C_items(1): it()
    if opts.get('s_stamps'): stamp(4, True)
    if opts.get('tlb', True):
        a("v_mov_b32 v5, 0")
        a("s_lshl_b32 s3, s%d, 5" % sB)
        a("s_add_u32 s3, s3, s%d" % sH0)
        a("s_add_u32 s3, s3, s%d" % sP)
        a("s_lshl_b32 s3, s3, 18")
        a.vmem("buffer_load_dword v46, v5, s[%d:%d], s3 offen nt" % (SV, SV + 3), "T")
        a("s_lshl_b32 s3, s%d, 17" % sH0)
        a.vmem("buffer_load_dword v47, v5, s[%d:%d], s3 offen" % (SWO, SWO + 3), "T")
        a("s_lshl_b32 s3, s%d, 4" % sB)
        a("s_add_u32 s3, s3, s%d" % sHP)
        a("s_mul_i32 s3, s3, %d" % (96 * 1024))
        a.vmem("buffer_load_dword v48, v5, s[%d:%d], s3 offen nt" % (SWS, SWS + 3), "T")

    for jj in range(4):
        a("v_add_u32 v4, %d, v2" % (4 * jj))
        a("v_xor_b32 v4, v3, v4")
        a("v_lshlrev_b32 v4, 4, v4")
        a("v_lshl_add_u32 v%d, v2, 8, v4" % vKd[jj])
    for jp in range(2):
        a("v_add_u32 v4, %d, v2" % (4 * jp))
        a("v_lshlrev_b32 v4, 1, v4")
        a("v_xor_b32 v4, v3, v4")
        a("v_lshlrev_b32 v4, 4, v4")
        a("v_lshl_add_u32 v%d, v2, 8, v4" % vVd[jp])
    a("s_lshl_b32 s%d, s%d, 13" % (sWoff, sP))
    a("s_lshl_b32 s3, s%d, 12" % sQH)
    a("s_add_u32 s%d, s%d, s3" % (sWoff, sWoff))
    a("s_lshl_b32 s%d, s%d, 5" % (sKV, sB))
    a("s_add_u32 s%d, s%d, s%d" % (sKV, sKV, sH0))
    a("s_add_u32 s%d, s%d, s%d" % (sKV, sKV, sP))
    a("s_lshl_b32 s%d, s%d, 18" % (sKV, sKV))
    a("s_add_u32 s%d, s%d, s3" % (sKV, sKV))
    a("s_mov_b32 s%d, s%d" % (sKVv, sKV))

    def part_items(tag, isv, slot_sgpr=None, slot_const=None):
        so = sKVv if isv else sKV
        def mk(jj):
            def f():
                mixed = opts.get('_mixed')
                if jj == 0 or mixed:
                    if slot_sgpr is not None:
                        a("s_add_u32 m0, s%d, s%d" % (slot_sgpr, sWoff))
                        if isv: a("s_add_u32 m0, m0, 16384")
                    else:
                        a("s_add_u32 m0, s%d, %d" % (sWoff, slot_const + (16384 if isv else 0)))
                    a("s_nop 0")
                if isv:
                    a.vmem("buffer_load_dwordx4 v%d, s[%d:%d], s%d offen offset:%d%s lds" % (vVd[jj & 1], SV, SV + 3, so, jj * 1024, NT), tag)
                else:
                    a.vmem("buffer_load_dwordx4 v%d, s[%d:%d], s%d offen offset:%d%s lds" % (vKd[jj], SK, SK + 3, so, jj * 1024, NT), tag)
                if jj == 3:
                    a("s_add_u32 s%d, s%d, %d" % (so, so, 0 if opts.get('kvsame') else 8192))
            return f
        return [mk(jj) for jj in range(4)]

    a("v_lshrrev_b32 v5, 2, v3")
    a("v_and_b32 v6, 3, v1")
    a("s_lshl_b32 s3, s%d, 13" % sP)
    for s in range(4):
        a("v_add_u32 v4, %d, v2" % (4 * s))
        a("v_xor_b32 v4, v4, v3")
        a("v_lshlrev_b32 v4, 4, v4")
        a("v_lshl_add_u32 v4, v3, 8, v4")
        a("v_add_u32 v%d, s3, v4" % aK[s])
    a("v_lshl_add_u32 v4, v2, 2, v5")
    a("v_and_b32 v0, 7, v4")
    a("v_lshlrev_b32 v0, 5, v0")
    a("v_lshl_add_u32 v0, v4, 8, v0")
    a("v_lshl_add_u32 v0, v6, 3, v0")
    a("s_add_u32 s%d, s3, 16384" % sTmp)
    a("v_add_u32 v%d, s%d, v0" % (aV[0], sTmp))
    a("s_lshl_b32 s3, s%d, 14" % sP)
    for dt in range(1, 8):
        a("v_xor_b32 v%d, %d, v%d" % (aV[dt], dt << 5, aV[0]))
    a("v_and_b32 v7, 1, v2")
    a("v_lshl_add_u32 v7, v7, 2, v5")
    a("v_lshl_add_u32 v4, v2, 3, v5")
    a("v_lshlrev_b32 v4, 8, v4")
    a("v_lshl_add_u32 v4, v7, 5, v4")
    a("v_lshl_add_u32 v4, v6, 3, v4")
    a("v_add_u32 v%d, s3, v4" % aW[0])
    for dt in range(1, 8):
        a("v_xor_b32 v%d, %d, v%d" % (aW[dt], dt << 5, aW[0]))
    a("v_lshrrev_b32 v4, 1, v3")
    a("s_mul_i32 s3, s%d, 6144" % sQH)
    a("s_add_u32 s3, s3, 32768")
    for ks in range(2):
        a("v_add_u32 v5, %d, v2" % (4 * ks))
        a("v_xor_b32 v5, v5, v4")
        a("v_lshlrev_b32 v5, 4, v5")
        a("v_lshl_add_u32 v5, v3, 7, v5")
        a("v_add_u32 v%d, s3, v5" % aX[ks])
    a("s_mov_b32 s%d, 0x%x" % (sC, fbits(C_SCALE)))
    a("v_mov_b32 v4, 0x3f803f80")
    for i in range(4):
        a("v_accvgpr_write_b32 a%d, v4" % (ONES + i))
    for i in range(12):
        a("v_accvgpr_write_b32 a%d, 0" % (48 + i))
    a("s_or_b32 s3, s2, s%d" % sW)
    a("s_cmp_eq_u32 s3, 0")
    a("s_cbranch_scc0 L_nononce")
    a("s_memrealtime s[%d:%d]" % (sN, sN + 1))
    a("s_waitcnt lgkmcnt(0)")
    a("s_or_b32 s%d, s%d, 1" % (sN, sN))
    a("v_mov_b32 v4, s%d" % sN)
    a("v_mov_b32 v5, s%d" % (sN + 1))
    a("v_mov_b32 v6, 0")
    a("buffer_store_dwordx2 v[4:5], v6, s[%d:%d], 0 offen sc1" % (SDBG, SDBG + 3))
    a.lab("L_nononce")

    tW = list(range(120, 128)); tX = [vT[4], vT[5]]
    opts['_mixed'] = True
    step_off = 0 if opts.get('kvsame') else 8192
    def touch_items():
        TF = opts.get('touch_flags', "")
        def prep():
            a("v_lshlrev_b32 v5, 7, v1")
            a("s_and_b32 s%d, s%d, 0xfffc0000" % (sTmp2, sKV))
            a("s_add_u32 s3, s%d, 1" % sQH)
            a("s_lshl_b32 s3, s3, 13")
            a("s_add_u32 s%d, s%d, s3" % (sTmp2, sTmp2))
        def tk():
            prep()
            a.vmem("buffer_load_dword v46, v5, s[%d:%d], s%d offen%s" % (SK, SK + 3, sTmp2, TF), "T")
        def tv():
            prep()
            a.vmem("buffer_load_dword v47, v5, s[%d:%d], s%d offen%s" % (SV, SV + 3, sTmp2, TF), "T")
        return [tk, tv]
    def x_read(i, ks, qt):
        if 'r' in opts.get('qabl', ''): return
        a.lds("ds_read_b128 %s, v%d offset:%d" % (vr(Xf(ks, qt)), tX[ks], qt * 2048), "x%d" % ks)
    def w_read(tl, dt, u):
        if 'r' in opts.get('qabl', ''): return
        a.lds("ds_read_b64_tr_b16 %s, v%d offset:%d" % (ar(Wf(tl, dt) + 2 * u, 2), tW[dt], tl * 8192 + u * 1024), "w%d_%d" % (tl, dt))
    W = lambda tl, dts: [(lambda tl=tl, dt=dt, u=u: w_read(tl, dt, u)) for dt in dts for u in range(2)]
    def q_addr(i):
        return [(lambda sp=sp: a("v_add_u32 v%d, %d, v%d" % (tW[sp], cbase(i), aW[sp]))) for sp in range(8)] + \
               [(lambda ks=ks: a("v_add_u32 v%d, %d, v%d" % (tX[ks], cbase(i), aX[ks]))) for ks in range(2)]
    def q_first(i):
        return [(lambda qt=qt: x_read(i, 0, qt)) for qt in range(3)] + W(0, range(0, 4))
    win = {}
    for i in range(0, 3 if QM2 else 5): win[i] = C_items(i + 3) if not opts.get('q_nodma') else []
    k0 = part_items("K0", False, slot_const=0)
    V1A = opts.get('v1ahead', False)
    kvall = part_items("V0", True, slot_const=0) + part_items("K1", False, slot_const=32768) + ([] if V1A else part_items("V1", True, slot_const=32768))
    assert QM2
    nb_ = opts.get('qm2_burst', 6)
    win[3] = kvall[:nb_]; win[4] = C_items(6); win[5] = C_items(7) + kvall[nb_:]
    if opts.get('qnokv'):
        win[3] = []; win[5] = C_items(7); k0 = []
    win[6] = part_items("K2", False, slot_const=65536) if not opts.get('qnokv') else []
    if KPRE: win[6] = win[6] + part_items("K3", False, slot_const=98304)
    win[7] = []
    TOUCH = opts.get('touch', True)
    pending = C_items(2) + k0 + (touch_items() if TOUCH else [])
    if opts.get('c1late', True):
        for it in C_items(1): it()
    if opts.get('s_stamps'): stamp(5, True)
    a.vwait("C0")
    stamp(1)
    a("s_barrier")
    if opts.get('qcyc'):
        a("s_memtime s[80:81]")
        a("s_waitcnt lgkmcnt(0)")
    for f in q_addr(0) + q_first(0): f()
    LB = 36
    for i in range(8):
        mf = []; pre = {}; fill = {}
        for tl in range(2):
            for dt in range(8):
                for qt in range(3):
                    c = "0" if (i == 0 and tl == 0) else vr(O(dt, qt))
                    mf.append(lambda tl=tl, dt=dt, qt=qt, c=c: a("v_mfma_f32_16x16x32_bf16 %s, %s, %s, %s" % (vr(O(dt, qt)), ar(Wf(tl, dt)), vr(Xf(tl, qt)), c)))
        for tl in range(2):
            for dt in (1, 3, 5, 7):
                g = tl * 24 + (dt - 1) * 3
                pre.setdefault(g, []).append(lambda tl=tl, dt=dt: a.lwait("w%d_%d" % (tl, dt)))
        spread(fill, W(0, range(4, 8)), 0, 6)
        spread(fill, [lambda qt=qt, i=i: x_read(i, 1, qt) for qt in range(3)] + W(1, range(0, 4)), 12, 20)
        spread(fill, W(1, range(4, 8)), 24, 30)
        qd = opts.get('qd')
        def late(i=i):
            a.lwait("w1_7")
            if qd == i: stamp(4, True)
            if i < 7: a.vwait("C%d" % (i + 1))
            if i == 7 and opts.get('fasttr', True) and KPRE: a.vwait("K1")
            if qd == i: stamp(5, True)
            if opts.get('q_stamps'): stamp(2 + i, True)
            if i in (2, 6) and not (opts.get('loopexit') and i == 2) and not opts.get('cyc') and not opts.get('qcyc'): stamp({2: 2, 6: 3}[i])
            if 'b' not in opts.get('qabl', ''): a("s_barrier")
            if qd == i: stamp(6, True)
        if qd == i:
            pre.setdefault(0, []).insert(0, lambda: stamp(1, True))
            pre.setdefault(12, []).insert(0, lambda: stamp(2, True))
            pre.setdefault(24, []).insert(0, lambda: stamp(3, True))
        if qd == i - 1:
            pre.setdefault(0, []).insert(0, lambda: stamp(7, True))
        pre.setdefault(LB, []).append(late)
        w = win.get(i, [])
        nfirst = (len(w) * (48 - LB)) // 46
        if i == 7: nfirst = len(w)
        if QM2 and i in (4, 5): nfirst = min(len(w), opts.get('qm2_first', 6))
        if 'd' in opts.get('qabl', ''): pending = []; w = []; nfirst = 0
        if pending: spread(fill, pending, 0, (opts.get('qm2_end', 14) if (QM2 and i in (5, 6)) else LB - 2))
        if nfirst and w: spread(fill, w[:nfirst], LB + 1, 48)
        pending = w[nfirst:]
        if i < 7:
            spread(fill, q_addr(i + 1), LB, LB + 3)
            spread(fill, q_first(i + 1), LB + 3, 48)
        run_gaps(48, mf, pre, fill)
    assert not pending and not a.lg, (pending, a.lg)
    if opts.get('qcyc'):
        a("s_memtime s[82:83]")
        a("s_waitcnt lgkmcnt(0)")
    opts['_mixed'] = False
    k = 0
    cvt_sets = [[112 + 4 * j + i for i in range(4)] for j in range(4)]
    work = [(sp, qt) for sp in range(4) for qt in range(3)]
    def q_cvt(n):
        sp, qt = work[n]; t = cvt_sets[n & 3]
        oa, ob = O(2 * sp, qt), O(2 * sp + 1, qt)
        a("v_cvt_pk_bf16_f32 v%d, v%d, v%d" % (t[0], oa, oa + 1))
        a("v_cvt_pk_bf16_f32 v%d, v%d, v%d" % (t[1], oa + 2, oa + 3))
        a("v_cvt_pk_bf16_f32 v%d, v%d, v%d" % (t[2], ob, ob + 1))
        a("v_cvt_pk_bf16_f32 v%d, v%d, v%d" % (t[3], ob + 2, ob + 3))
    def q_s32(n):
        t = cvt_sets[n & 3]
        a("v_permlane32_swap_b32 v%d, v%d" % (t[0], t[2]))
        a("v_permlane32_swap_b32 v%d, v%d" % (t[1], t[3]))
    def q_s16(n):
        t = cvt_sets[n & 3]
        a("v_permlane16_swap_b32 v%d, v%d" % (t[0], t[2]))
        a("v_permlane16_swap_b32 v%d, v%d" % (t[1], t[3]))
    def q_wr(n):
        sp, qt = work[n]; t = cvt_sets[n & 3]
        for i in range(4):
            a("v_accvgpr_write_b32 a%d, v%d" % (Qa(sp, qt) + i, t[i]))
    FASTTR = opts.get('fasttr', True) and KPRE
    def q_slot(n):
        if n < 12: q_cvt(n)
        if 0 <= n - 1 < 12: q_s32(n - 1)
        if 0 <= n - 2 < 12: q_s16(n - 2)
        if 0 <= n - 3 < 12: q_wr(n - 3)
    def wo_setup():
        it = []
        for jp in range(2):
            it += [lambda jp=jp: a("v_add_u32 v4, %d, v2" % (4 * jp)), lambda: a("v_lshlrev_b32 v4, 1, v4"), lambda: a("v_xor_b32 v4, v3, v4"),
                   lambda: a("v_lshlrev_b32 v4, 4, v4"), lambda jp=jp: a("v_lshl_add_u32 v%d, v2, 10, v4" % vWo[jp])]
        it += [lambda: a("v_lshlrev_b32 v%d, 4, v1" % vL16), lambda: a("s_lshl_b32 s%d, s%d, 17" % (sWoB, sH0)),
               lambda: a("s_lshl_b32 s3, s%d, 15" % sW), lambda: a("s_add_u32 s%d, s%d, s3" % (sWoB, sWoB))]
        return it
    if not FASTTR:
        for n in range(12 + 3): q_slot(n)
        for f in wo_setup(): f()
    stamp(4)
    if opts.get('cyc'):
        a("s_memtime s[80:81]")
        a("s_waitcnt lgkmcnt(0)")

    def k_read(s, kt, kb=0):
        if 'k' in opts.get('abl', ''): return
        a.lds("ds_read_b128 %s, v%d offset:%d" % (ar(Kf(s, kt, kb)), aK[s], kt * 4096), "k%d" % s)
    def v_read(dt, u):
        if 'v' in opts.get('abl', ''): return
        a.lds("ds_read_b64_tr_b16 %s, v%d offset:%d" % (ar(Vf(dt) + 2 * u, 2), aV[dt], u * 4096), "v%d" % dt)
    def qk_mfma(buf, m, kb=0):
        s, kt, qt = m // 6, (m % 6) // 3, m % 3
        c = "0" if s == 0 else vr(Sb(buf, kt, qt))
        a("v_mfma_f32_16x16x32_bf16 %s, %s, %s, %s" % (vr(Sb(buf, kt, qt)), ar(Kf(s, kt, kb)), ar(Qa(s, qt)), c))

    if FASTTR:
        def z_read(s_, kt): a.lds("ds_read_b128 %s, v%d offset:%d" % (ar(Kf(s_, kt, 0)), aK[s_], kt * 4096), "z%d" % s_)
        for s_ in range(4):
            for kt in range(2): z_read(s_, kt)
        for s_ in range(4):
            a("v_add_u32 v%d, 32768, v%d" % (aK[s_], aK[s_]))
        for n in range(6): q_slot(n)
        mf = [(lambda m=m: qk_mfma(0, m)) for m in range(24)]
        pre = {0: [lambda: a.lwait("z0")], 6: [lambda: a.lwait("z1")], 12: [lambda: a.lwait("z2")], 18: [lambda: a.lwait("z3")]}
        fill = {}
        for k_, n in enumerate(range(6, 15)):
            fill.setdefault(2 * k_ + 1 if k_ % 3 != 2 else 2 * k_, []).append(lambda n=n: q_slot(n))
        k1 = [(lambda s_=s_, kt=kt: k_read(s_, kt, 1)) for s_ in range(4) for kt in range(2)]
        spread(fill, k1[:4], 7, 11)
        spread(fill, k1[4:], 13, 17)
        spread(fill, [(lambda s_=s_: a("v_add_u32 v%d, 32768, v%d" % (aK[s_], aK[s_]))) for s_ in range(4)], 18, 20)
        spread(fill, wo_setup(), 19, 24)
        run_gaps(24, mf, pre, fill)
    else:
        for s in range(4):
            for kt in range(2): k_read(s, kt)
        for i in range(96):
            a("v_mov_b32 v%d, 0" % (152 + i))
        for m in range(24):
            if m % 6 == 0: a.lwait("k%d" % (m // 6))
            qk_mfma(0, m)
        for s in range(4):
            a("v_add_u32 v%d, 32768, v%d" % (aK[s], aK[s]))
        if KPRE:
            a.vwait("K1")
            a("s_barrier")
            for s in range(4):
                for kt in range(2): k_read(s, kt, 1)
            for s in range(4):
                a("v_add_u32 v%d, 32768, v%d" % (aK[s], aK[s]))
    for qt in range(3):
        s0, s1 = Sb(0, 0, qt), Sb(0, 1, qt)
        mx, t = vT[0], vT[1]
        a("v_max3_f32 v%d, v%d, v%d, v%d" % (mx, s0, s0 + 1, s0 + 2))
        a("v_max3_f32 v%d, v%d, v%d, v%d" % (t, s0 + 3, s1, s1 + 1))
        a("v_max3_f32 v%d, v%d, v%d, v%d" % (mx, mx, s1 + 2, s1 + 3))
        a("v_max_f32 v%d, v%d, v%d" % (mx, mx, t))
        a("v_mov_b32 v%d, v%d" % (t, mx))
        a("v_permlane16_swap_b32 v%d, v%d" % (t, mx))
        a("v_max_f32 v%d, v%d, v%d" % (mx, mx, t))
        a("v_mov_b32 v%d, v%d" % (t, mx))
        a("v_permlane32_swap_b32 v%d, v%d" % (t, mx))
        a("v_max_f32 v%d, v%d, v%d" % (mx, mx, t))
        a("v_mul_f32 v%d, s%d, v%d" % (vMC[qt], sC, mx))
    a("s_mov_b32 s%d, 0" % sCur)
    a("s_mov_b32 s%d, %d" % (sNxt, 65536 if KPRE else 32768))
    a("s_mov_b32 s%d, 131072" % sPrev)
    a("s_mov_b32 s%d, 0" % sT)
    assert V1A or not KPRE

    rare_blocks = []
    def step(vmn, dma_items, uid, buf, qk=True, throttle_ok=True, kread=True, first=False):
        BG = opts.get('bgap') if (qk and KPRE) else None
        def bar():
            a("s_waitcnt vmcnt(%d)" % vmn)
            if 'b' not in opts.get('abl', ''): a("s_barrier")
        V = lambda dts: [(lambda dt=dt, u=u: v_read(dt, u)) for dt in dts for u in range(2)]
        if BG is None:
            bar()
            if qk and not KPRE:
                for s in range(4):
                    for kt in range(2): k_read(s, kt)
            for f in V(range(0, 3)): f()
        AB = opts.get('abl', '')
        def fma(qt, j):
            if 'f' in AB: return
            r = Sb(buf, j >> 2, qt) + (j & 3)
            a("v_fma_f32 v%d, v%d, s%d, -v%d" % (r, r, sC, vMC[qt]))
        def ex(qt, j):
            if 'e' in AB: return
            r = Sb(buf, j >> 2, qt) + (j & 3)
            a("v_exp_f32 v%d, v%d" % (r, r))
        def cv(qt, j):
            if 'c' in AB: return
            kt, h = j >> 1, j & 1
            s0 = Sb(buf, kt, qt) + 2 * h
            a("v_cvt_pk_bf16_f32 v%d, v%d, v%d" % (P(qt) + 2 * kt + h, s0, s0 + 1))
        FM = lambda qt: [(lambda j=j: fma(qt, j)) for j in range(8)]
        EX = lambda qt: [(lambda j=j: ex(qt, j)) for j in range(8)]
        CV = lambda qt: [(lambda j=j: cv(qt, j)) for j in range(4)]
        allr = [Sb(buf, j >> 2, qt) + (j & 3) for qt in range(3) for j in range(8)]
        MX = []
        t = vT[0:4]
        for k in range(4):
            r = allr[6 * k:6 * k + 6]
            MX.append(lambda k=k, r=r: a("v_max3_f32 v%d, v%d, v%d, v%d" % (t[k], r[0], r[1], r[2])))
            MX.append(lambda k=k, r=r: a("v_max3_f32 v%d, v%d, v%d, v%d" % (t[k], t[k], r[3], r[4])))
        r5 = [allr[6 * k + 5] for k in range(4)]
        MX.append(lambda: a("v_max3_f32 v%d, v%d, v%d, v%d" % (t[0], t[0], t[1], r5[0])))
        MX.append(lambda: a("v_max3_f32 v%d, v%d, v%d, v%d" % (t[2], t[2], t[3], r5[1])))
        MX.append(lambda: a("v_max3_f32 v%d, v%d, v%d, v%d" % (t[0], t[0], r5[2], r5[3])))
        MX.append(lambda: a("v_max_f32 v%d, v%d, v%d" % (t[0], t[0], t[2])))
        if 'm' in AB: MX = [lambda: None]
        def chk():
            if 'm' in AB:
                a.lab("L_cont_%s" % uid); return
            a("v_cmp_lt_f32 vcc, 0x%x, v%d" % (fbits(T_LOG2), t[0]))
            a("s_cbranch_vccnz L_rare_%s" % uid)
            a.lab("L_cont_%s" % uid)
        rare_blocks.append((uid, buf))
        def pv(g):
            qt, k = g // 9, g % 9
            if k == 0:
                a("v_mfma_f32_16x16x32_bf16 %s, %s, %s, %s" % (ar(La(qt)), ar(ONES), vr(P(qt)), "0" if first else ar(La(qt))))
            else:
                dt = k - 1
                a("v_mfma_f32_16x16x32_bf16 %s, %s, %s, %s" % (vr(O(dt, qt)), ar(Vf(dt)), vr(P(qt)), "0" if first else vr(O(dt, qt))))
        def slots():
            if KPRE:
                a("s_mov_b32 s%d, s%d" % (sPrev, sCur))
                a("s_add_u32 s%d, s%d, 32768" % (sCur, sCur))
                a("s_cmp_eq_u32 s%d, 163840" % sCur)
                a("s_cselect_b32 s%d, 0, s%d" % (sCur, sCur))
                a("s_sub_u32 s%d, s%d, s%d" % (sDV, sCur, sPrev))
                a("s_mov_b32 s3, s%d" % sNxt)
                a("s_add_u32 s%d, s%d, 32768" % (sNxt, sNxt))
                a("s_cmp_eq_u32 s%d, 163840" % sNxt)
                a("s_cselect_b32 s%d, 0, s%d" % (sNxt, sNxt))
                a("s_sub_u32 s%d, s%d, s3" % (sDK, sNxt))
            else:
                a("s_mov_b32 s%d, s%d" % (sPrev, sCur))
                a("s_mov_b32 s%d, s%d" % (sCur, sNxt))
                a("s_add_u32 s%d, s%d, 32768" % (sNxt, sNxt))
                a("s_cmp_eq_u32 s%d, 163840" % sNxt)
                a("s_cselect_b32 s%d, 0, s%d" % (sNxt, sNxt))
                a("s_sub_u32 s%d, s%d, s%d" % (sDK, sNxt, sCur))
                a("s_sub_u32 s%d, s%d, s%d" % (sDV, sCur, sPrev))
        ADDR = [(lambda r=r: a("v_add_u32 v%d, s%d, v%d" % (r, sDK, r))) for r in aK] + \
               [(lambda r=r: a("v_add_u32 v%d, s%d, v%d" % (r, sDV, r))) for r in aV]
        if qk:
            for f in FM(0): f()
            kb_use = (buf ^ 1) if KPRE else 0
            mf = [(lambda m=m: qk_mfma(buf ^ 1, m, kb_use)) for m in range(24)] + [(lambda g=g: pv(g)) for g in range(27)]
            pre = {0: [lambda: a.lwait("k0")], 6: [lambda: a.lwait("k1")], 12: [lambda: a.lwait("k2")], 18: [lambda: a.lwait("k3")],
                   25: [lambda: a.lwait("v3")], 29: [lambda: a.lwait("v7")]}
            fill = {}
            spread(fill, FM(1) + FM(2), 0, 6)
            spread(fill, MX, 6, 10)
            if BG is None:
                spread(fill, V(range(3, 5)), 6, 10)
            fill.setdefault(9, []).append(chk)
            if BG is not None:
                pre.setdefault(BG, []).insert(0, bar)
                spread(fill, V(range(0, 3)), BG, BG + 4)
                spread(fill, V(range(3, 6)), BG + 6, BG + 11)
                fill.setdefault(18, []).append(lambda: a.lwait("v1"))
                spread(fill, V(range(6, 8)), 19, 23)
                spread(fill, EX(0) + CV(0), 10, 19)
                spread(fill, EX(1) + CV(1), 19, 31)
                spread(fill, EX(2) + CV(2), 31, 41)
            elif opts.get('reb', True):
                spread(fill, EX(0) + CV(0), 10, 19)
                spread(fill, V(range(5, 6)), 12, 14)
                spread(fill, V(range(6, 7)), 18, 20)
                fill.setdefault(21, []).append(lambda: a.lwait("v0"))
                spread(fill, V(range(7, 8)), 21, 23)
                spread(fill, EX(1) + CV(1), 19, 31)
                spread(fill, EX(2) + CV(2), 31, 41)
            else:
                spread(fill, EX(0) + CV(0) + EX(1), 10, 18)
                spread(fill, V(range(5, 6)), 12, 14)
                spread(fill, V(range(6, 7)), 18, 20)
                spread(fill, CV(1) + EX(2), 18, 24)
                fill.setdefault(21, []).append(lambda: a.lwait("v0"))
                spread(fill, V(range(7, 8)), 21, 23)
                spread(fill, CV(2), 24, 27)
            if KPRE and kread:
                spread(fill, [(lambda s_=s_, kt=kt: k_read(s_, kt, buf)) for s_ in range(4) for kt in range(2)], 33, 45)
            d0, d1 = opts.get('dspread', (26, 42))
            if BG is not None: d0 = max(d0, BG + 1)
            TH = opts.get('throttle')
            if TH and throttle_ok:
                pat = TH if isinstance(TH, (list, tuple)) else [TH]
                dma_items = [(lambda f=f, th=pat[k % len(pat)]: (a("s_waitcnt vmcnt(%d)" % (th - 1)), f())) for k, f in enumerate(dma_items)]
            spread(fill, dma_items, d0, d1)
            fill.setdefault(max(41, d1 - 1), []).append(slots)
            spread(fill, ADDR, max(42, d1), 51) if d1 < 50 else spread(fill, ADDR, 50, 51)
            run_gaps(51, mf, pre, fill)
        else:
            for f in V(range(3, 7)): f()
            for f in FM(0) + FM(1) + FM(2) + MX: f()
            chk()
            a.lwait("v3")
            for f in V(range(7, 8)): f()
            for f in EX(0) + CV(0): f()
            mf = [(lambda g=g: pv(g)) for g in range(27)]
            pre = {1: [lambda: a.lwait("v3")], 5: [lambda: a.lwait("v7")]}
            fill = {}
            spread(fill, EX(1) + CV(1), 0, 8)
            spread(fill, EX(2) + CV(2), 9, 17)
            spread(fill, dma_items, 18, 26)
            run_gaps(27, mf, pre, fill)
        assert KPRE or not a.lg, a.lg

    def rare(uid, buf):
        a.lab("L_rare_%s" % uid)
        for qt in range(3):
            s0, s1 = Sb(buf, 0, qt), Sb(buf, 1, qt)
            mx, t = vT[4], vT[5]
            a("v_max3_f32 v%d, v%d, v%d, v%d" % (mx, s0, s0 + 1, s0 + 2))
            a("v_max3_f32 v%d, v%d, v%d, v%d" % (t, s0 + 3, s1, s1 + 1))
            a("v_max3_f32 v%d, v%d, v%d, v%d" % (mx, mx, s1 + 2, s1 + 3))
            a("v_max3_f32 v%d, v%d, v%d, 0" % (mx, mx, t))
            a("v_mov_b32 v%d, v%d" % (t, mx))
            a("v_permlane16_swap_b32 v%d, v%d" % (t, mx))
            a("v_max_f32 v%d, v%d, v%d" % (mx, mx, t))
            a("v_mov_b32 v%d, v%d" % (t, mx))
            a("v_permlane32_swap_b32 v%d, v%d" % (t, mx))
            a("v_max_f32 v%d, v%d, v%d" % (mx, mx, t))
            a("v_add_f32 v%d, v%d, v%d" % (vMC[qt], vMC[qt], mx))
            for j in range(4):
                a("v_sub_f32 v%d, v%d, v%d" % (s0 + j, s0 + j, mx))
                a("v_sub_f32 v%d, v%d, v%d" % (s1 + j, s1 + j, mx))
            a("v_sub_f32 v%d, 0, v%d" % (t, mx))
            a("v_exp_f32 v%d, v%d" % (t, t))
            a("s_nop 0")
            for dt in range(8):
                for j in range(4):
                    a("v_mul_f32 v%d, v%d, v%d" % (O(dt, qt) + j, t, O(dt, qt) + j))
            for j in range(4):
                a("v_accvgpr_read_b32 v%d, a%d" % (mx, La(qt) + j))
                a("v_mul_f32 v%d, v%d, v%d" % (mx, t, mx))
                a("v_accvgpr_write_b32 a%d, v%d" % (La(qt) + j, mx))
        a("s_branch L_cont_%s" % uid)

    saved_vm = list(a.vm)
    def dma_slots():
        a("s_add_u32 s%d, s%d, %d" % (sSK, sCur, 131072 if KPRE else 98304))
        a("s_cmp_ge_u32 s%d, 163840" % sSK)
        a("s_cselect_b32 s3, 163840, 0")
        a("s_sub_u32 s%d, s%d, s3" % (sSK, sSK))
        a("s_add_u32 s%d, s%d, %d" % (sSV, sCur, 32768 if V1A else 65536))
        a("s_cmp_ge_u32 s%d, 163840" % sSV)
        a("s_cselect_b32 s3, 163840, 0")
        a("s_sub_u32 s%d, s%d, s3" % (sSV, sSV))
    def kv_iter_items(k=True, v=True, tk="Kx", tv="Vx"):
        it = []
        if V1A:
            if v: it += part_items(tv, True, slot_sgpr=sSV)
            if k: it += part_items(tk, False, slot_sgpr=sSK)
        else:
            if k: it += part_items(tk, False, slot_sgpr=sSK)
            if v: it += part_items(tv, True, slot_sgpr=sSV)
        f0 = it[0]
        it[0] = lambda: (dma_slots(), f0())
        return it
    def loop(tag, th):
        opts['throttle'] = th
        if FASTTR:
            step(4 if V1A else 8, kv_iter_items(), "f0" + tag, 0, first=True)
            step(4 if V1A else 8, kv_iter_items(), "f1" + tag, 1)
            a("s_mov_b32 s%d, 2" % sT)
        a.lab("L_loop%s" % tag)
        step(4 if V1A else 8, kv_iter_items(), "m0" + tag, 0)
        step(4 if V1A else 8, kv_iter_items(), "m1" + tag, 1)
        a("s_add_u32 s%d, s%d, 2" % (sT, sT))
        a("s_cmp_lt_u32 s%d, 28" % sT)
        a("s_cbranch_scc1 L_loop%s" % tag)
    if 'throttle_odd' in opts:
        th_e, th_o = opts['throttle'], opts['throttle_odd']
        a("s_getreg_b32 s3, hwreg(HW_REG_XCC_ID, 0, 1)")
        a("s_cmp_eq_u32 s3, 1")
        a("s_cbranch_scc1 L_loop_o")
        loop("_e", th_e)
        a("s_branch L_loop_done")
        loop("_o", th_o)
        a.lab("L_loop_done")
    else:
        loop("", opts.get('throttle'))
    if opts.get('loopexit'): stamp(2, True)
    a.vm = (["V28"] * 4 + ["K30"] * 4) if V1A else (["K30"] * 4 + ["V29"] * 4)

    USLOT = [65536, 98304, 131072]
    sL = sR0
    sBi = 71
    SPLIT = opts.get('split', False)
    def um(j): return (0 if j < 2 else ((j - 1) if j < 5 else (j - 4))) if SPLIT else (j >> 1)
    def upar(j): return (j if j < 2 else (0 if j < 5 else 1)) if SPLIT else (j & 1)
    def pair_of(j):
        m = um(j)
        if m == 0:
            a("s_mov_b32 s%d, s%d" % (sTmp2, sL))
        else:
            a("s_add_u32 s%d, s%d, %d" % (sTmp2, sBi, m - 1))
            a("s_cmp_ge_u32 s%d, 3" % sTmp2)
            a("s_cselect_b32 s3, 3, 0")
            a("s_sub_u32 s%d, s%d, s3" % (sTmp2, sTmp2))
            a("s_add_u32 s%d, s%d, s%d" % (sTmp2, sTmp2, sL))
            a("s_add_u32 s%d, s%d, 1" % (sTmp2, sTmp2))
            a("s_and_b32 s%d, s%d, 3" % (sTmp2, sTmp2))
    def U_items(j):
        def one(jj):
            if jj == 0:
                pair_of(j)
                a("s_and_b32 s3, s%d, 12" % sHP)
                a("s_add_u32 s%d, s%d, s3" % (sTmp2, sTmp2))
                a("s_lshl_b32 s%d, s%d, 1" % (sTmp2, sTmp2))
                a("s_add_u32 s%d, s%d, %d" % (sTmp2, sTmp2, upar(j)))
                a("s_lshl_b32 s%d, s%d, 17" % (sCB, sTmp2))
                a("s_lshl_b32 s3, s%d, 15" % sW)
                a("s_add_u32 s%d, s%d, s3" % (sCB, sCB))
                a("s_lshl_b32 s3, s%d, 8" % sL)
                a("s_add_u32 s%d, s%d, s3" % (sCB, sCB))
            a("s_add_u32 m0, s%d, %d" % (sW8k, USLOT[j % 3] + jj * 1024))
            a("s_add_u32 s%d, s%d, %d" % (sTmp, sCB, 4 * jj * 1024))
            a.vmem("buffer_load_dwordx4 v%d, s[%d:%d], s%d offen%s lds" % (vWo[jj & 1], SWO, SWO + 3, sTmp, WOF), "U%d" % j)
        return [(lambda jj=jj: one(jj)) for jj in range(8)]
    sOB = 72
    def O_items(j):
        def one(k):
            if k == 0:
                pair_of(j)
                a("s_and_b32 s3, s%d, 12" % sHP)
                a("s_add_u32 s%d, s%d, s3" % (sTmp2, sTmp2))
                a("s_lshl_b32 s%d, s%d, 1" % (sTmp2, sTmp2))
                a("s_add_u32 s%d, s%d, %d" % (sTmp2, sTmp2, upar(j)))
                a("s_lshl_b32 s3, s%d, 5" % sB)
                a("s_add_u32 s%d, s%d, s3" % (sTmp2, sTmp2))
                a("s_mul_i32 s%d, s%d, 24576" % (sOB, sTmp2))
                a("s_mul_i32 s3, s%d, 6144" % sW)
                a("s_add_u32 s%d, s%d, s3" % (sOB, sOB))
                if OBASE: a("s_add_u32 s%d, s%d, %d" % (sOB, sOB, OBASE))
                a("s_mul_i32 s%d, s%d, 6144" % (sM0, sW))
            a("s_add_u32 m0, s%d, %d" % (sM0, (j & 1) * 24576 + k * 1024))
            a("s_add_u32 s%d, s%d, %d" % (sTmp, sOB, k * 1024))
            a.vmem("buffer_load_dwordx4 v%d, s[%d:%d], s%d offen%s lds" % (vL16, SWS, SWS + 3, sTmp, PLD), "O%d" % j)
        return [(lambda k=k: one(k)) for k in range(6)]
    def nonce_load():
        a("v_mov_b32 v4, 0")
        a.vmem("buffer_load_dwordx2 v[2:3], v4, s[%d:%d], 0 offen sc1" % (SDBG, SDBG + 3), "N")
    a("s_and_b32 s%d, s%d, 3" % (sL, sHP))
    a("s_and_b32 s%d, s%d, 7" % (sBi, sB))
    a("s_cmp_ge_u32 s%d, 6" % sBi)
    a("s_cselect_b32 s3, 6, 0")
    a("s_sub_u32 s%d, s%d, s3" % (sBi, sBi))
    a("s_cmp_ge_u32 s%d, 3" % sBi)
    a("s_cselect_b32 s3, 3, 0")
    a("s_sub_u32 s%d, s%d, s3" % (sBi, sBi))
    TT = opts.get('tail_throttle', True)
    if V1A and KPRE:
        a.vm = ["V28"] * 4 + ["K31"] * 4
        step(a.vcount("V28"), kv_iter_items(k=False, tv="V29") + U_items(0), "t0", 0, throttle_ok=TT)
        step(a.vcount("V29"), kv_iter_items(k=False, tv="V30") + U_items(1), "t1", 1, throttle_ok=TT)
        step(a.vcount("V30"), kv_iter_items(k=False, tv="V31") + U_items(2), "t2", 0, throttle_ok=False, kread=False)
        a.lwait_all()
        step(a.vcount("V31"), [nonce_load], "t3", 1, qk=False)
    elif V1A:
        step(a.vcount("V28"), kv_iter_items(tk="K31", tv="V29") + U_items(0), "t0", 0, throttle_ok=TT)
        step(a.vcount("V29"), kv_iter_items(k=False, tv="V30") + U_items(1), "t1", 1, throttle_ok=TT)
        n = max(a.vcount("V30"), 0)
        step(n, kv_iter_items(k=False, tv="V31") + U_items(2), "t2", 0, throttle_ok=False)
        step(a.vcount("V31"), [nonce_load], "t3", 1, qk=False)
    else:
        step(8, kv_iter_items(tk="K31", tv="V30") + U_items(0), "t0", 0, throttle_ok=TT)
        n = a.vcount("V29")
        step(n, kv_iter_items(k=False, tv="V31") + U_items(1), "t1", 1, throttle_ok=TT)
        n = a.vcount("V30")
        step(n, U_items(2), "t2", 0, throttle_ok=False)
        n = a.vcount("V31")
        step(n, [nonce_load], "t3", 1, qk=False)
    stamp(5)
    if opts.get('cyc'):
        a("s_memtime s[82:83]")
        a("s_waitcnt lgkmcnt(0)")

    F = lambda s, qt: 52 + (s * 3 + qt) * 4
    for qt in range(3):
        a("v_accvgpr_read_b32 v%d, a%d" % (vT[6 + qt], La(qt)))
    for qt in range(3):
        a("v_rcp_f32 v%d, v%d" % (vT[6 + qt], vT[6 + qt]))
    a("s_lshl_b32 s%d, s%d, 5" % (sPart, sB))
    a("s_add_u32 s%d, s%d, s%d" % (sPart, sPart, sH0))
    a("s_add_u32 s%d, s%d, s%d" % (sPart, sPart, sP))
    a("s_mul_i32 s%d, s%d, 6" % (sPart, sPart))
    a("s_mul_i32 s3, s%d, 3" % sQH)
    a("s_add_u32 s%d, s%d, s3" % (sPart, sPart))
    a("s_lshl_b32 s%d, s%d, 12" % (sPart, sPart))
    if OBASE: a("s_add_u32 s%d, s%d, %d" % (sPart, sPart, OBASE))
    def o_store(s_, qt, who):
        d = F(s_, qt)
        txt = "buffer_store_dwordx4 %s, v%d, s[%d:%d], s%d offen offset:%d%s" % (vr(d), vL16, SWS, SWS + 3, sTmp, s_ * 1024, PST)
        if not SPLIT:
            a("s_add_u32 s%d, s%d, %d" % (sTmp, sPart, qt * 4096)); a.vmem(txt, "OS"); return
        l = a.uid("L_os")
        a("s_cmp_eq_u32 s%d, %d" % (sP, who))
        a("s_cbranch_scc0 %s" % l)
        a("s_add_u32 s%d, s%d, %d" % (sTmp, sPart, qt * 4096))
        a(txt)
        a.lab(l)
    if not opts.get('noexbar', True): a("s_barrier")
    a("s_mul_i32 s3, s%d, 12288" % sW)
    a("v_add_u32 v4, s3, v%d" % vL16)
    for qt in range(3):
        for s in range(4):
            d = F(s, qt)
            for ab in range(2):
                o = O(2 * s + ab, qt)
                for j in range(0, 4, 2):
                    a("v_pk_mul_f32 v[%d:%d], v[%d:%d], v[%d:%d] op_sel_hi:[1,0]" % (o + j, o + j + 1, o + j, o + j + 1, vT[6 + qt] & ~1, (vT[6 + qt] & ~1) + 1)) if False else None
                for j in range(4):
                    a("v_mul_f32 v%d, v%d, v%d" % (o + j, vT[6 + qt], o + j))
                a("v_cvt_pk_bf16_f32 v%d, v%d, v%d" % (d + 2 * ab, o, o + 1))
                a("v_cvt_pk_bf16_f32 v%d, v%d, v%d" % (d + 2 * ab + 1, o + 2, o + 3))
            o_store(s, qt, 0)
            a.lds("ds_write_b128 v4, %s offset:%d" % (vr(d), (s * 3 + qt) * 1024), "ex")
    a.lwait_all()
    a("s_barrier")
    Bo = lambda ks, qt: 152 + (ks * 3 + qt) * 4
    a("s_mul_i32 s3, s%d, 12288" % sQH)
    a("v_add_u32 v4, s3, v%d" % vL16)
    n = 0
    for pp in range(2):
        for s in range(4):
            for qt in range(3):
                if n == 12: a.lwait_all()
                a.lds("ds_read_b128 %s, v4 offset:%d" % (vr(Bo(4 * pp + s, qt)), pp * 24576 + (s * 3 + qt) * 1024), "bo")
                n += 1
    aO = [[34 + 4 * bb + nt for nt in range(4)] for bb in range(3)]
    a("s_lshl_b32 s3, s%d, 7" % sP)
    a("v_xor_b32 v%d, s3, v0" % aO[0][0])
    for nt in range(1, 4):
        a("v_xor_b32 v%d, %d, v%d" % (aO[0][nt], nt << 5, aO[0][0]))
    for bb in (1, 2):
        for nt in range(4):
            a("v_add_u32 v%d, %d, v%d" % (aO[bb][nt], 65536 * bb, aO[0][nt]))
    vOB = 46
    a("s_mul_i32 s3, s%d, 12288" % sQH)
    a("v_add_u32 v%d, s3, v%d" % (vOB, vL16))
    a.lwait_all()
    stamp(6)

    ACC = lambda nt, qt: (100 if SPLIT else 52) + (nt * 3 + qt) * 4
    Af = lambda buf, nt: 64 + buf * 16 + nt * 4
    Bf = lambda buf, qt: (52 if SPLIT else 100) + buf * 12 + qt * 4
    def a_read(j, kl, nt, u):
        base = USLOT[j % 3] + kl * 8192
        bb, off = base >> 16, base & 0xffff
        a.lds("ds_read_b64_tr_b16 %s, v%d offset:%d" % (ar(Af(kl & 1, nt) + 2 * u, 2), aO[bb][nt], off + u * 4096), "a%d_%d" % (j, kl))
    def b_read(j, kl, qt):
        a.lds("ds_read_b128 %s, v%d offset:%d" % (vr(Bf(kl & 1, qt)), vOB, (j & 1) * 24576 + (qt * 4 + kl) * 1024), "a%d_%d" % (j, kl))
    def AB_items(j, kl):
        it = []
        if j >= 2: it += [(lambda qt=qt: b_read(j, kl, qt)) for qt in range(3)]
        if j not in RES: it += [(lambda nt=nt, u=u: a_read(j, kl, nt, u)) for nt in range(4) for u in range(2)]
        return it
    RES = {2: 128, 3: 192} if opts.get('pull', True) else {}
    def pull(j):
        n = 0
        for kl in range(4):
            base = USLOT[j % 3] + kl * 8192
            bb, off = base >> 16, base & 0xffff
            for nt in range(4):
                for u in range(2):
                    if len(a.lg) >= 14: a.lwait(a.lg[7])
                    a.lds("ds_read_b64_tr_b16 %s, v%d offset:%d" % (ar(RES[j] + (kl * 4 + nt) * 4 + 2 * u, 2), aO[bb][nt], off + u * 4096), "p%d_%d" % (j, n))
                    n += 1

    def publish(own_off_code, uid):
        a("s_cmp_eq_u32 s%d, 0" % sW)
        a("s_cbranch_scc0 L_pskip_%s" % uid)
        a("s_mov_b32 s%d, 0" % sT)
        a.lab("L_nonce_%s" % uid)
        a("s_add_u32 s%d, s%d, 1" % (sT, sT))
        a("s_cmp_gt_u32 s%d, 0x40000" % sT)
        a("s_cbranch_scc1 L_pskip_%s" % uid)
        a("v_or_b32 v4, v2, v3")
        a("v_cmp_eq_u32 vcc, 0, v4")
        a("s_cbranch_vccz L_nok_%s" % uid)
        a("s_sleep 2")
        a("v_mov_b32 v4, 0")
        a("buffer_load_dwordx2 v[2:3], v4, s[%d:%d], 0 offen sc1" % (SDBG, SDBG + 3))
        a("s_waitcnt vmcnt(0)")
        a("s_branch L_nonce_%s" % uid)
        a.lab("L_nok_%s" % uid)
        own_off_code()
        a("v_mov_b32 v4, 0")
        a("buffer_store_dwordx2 v[2:3], v4, s[%d:%d], s%d offen sc1" % (SWS, SWS + 3, sTmp))
        a.lab("L_pskip_%s" % uid)
    def wait_flags(poll_off_code, nfl, uid):
        a("s_cmp_eq_u32 s%d, 0" % sW)
        a("s_cbranch_scc0 L_skip_%s" % uid)
        a("s_mov_b32 s%d, 0" % sT)
        poll_off_code()
        a("v_and_b32 v5, %d, v1" % (nfl - 1))
        a("v_lshlrev_b32 v5, 3, v5")
        a("buffer_load_dwordx2 v[6:7], v5, s[%d:%d], s%d offen sc1" % (SWS, SWS + 3, sTmp))
        a.lab("L_poll_%s" % uid)
        a("s_add_u32 s%d, s%d, 1" % (sT, sT))
        a("s_cmp_gt_u32 s%d, 0x40000" % sT)
        a("s_cbranch_scc1 L_pdone_%s" % uid)
        a("buffer_load_dwordx2 v[48:49], v5, s[%d:%d], s%d offen sc1" % (SWS, SWS + 3, sTmp))
        a("s_waitcnt vmcnt(1)")
        a("v_xor_b32 v6, v6, v2")
        a("v_xor_b32 v7, v7, v3")
        a("v_or_b32 v6, v6, v7")
        a("v_cmp_ne_u32 vcc, 0, v6")
        a("s_cbranch_vccz L_pdone_%s" % uid)
        a("buffer_load_dwordx2 v[6:7], v5, s[%d:%d], s%d offen sc1" % (SWS, SWS + 3, sTmp))
        a("s_waitcnt vmcnt(1)")
        a("v_xor_b32 v48, v48, v2")
        a("v_xor_b32 v49, v49, v3")
        a("v_or_b32 v48, v48, v49")
        a("v_cmp_ne_u32 vcc, 0, v48")
        a("s_cbranch_vccnz L_poll_%s" % uid)
        a.lab("L_pdone_%s" % uid)
        a("s_waitcnt vmcnt(0)")
        a.lab("L_skip_%s" % uid)
        a("s_barrier")

    def head(j, nxt_ready):
        mf = []; pre = {}; fill = {}
        for kl in range(4):
            for nt in range(4):
                for qt in range(3):
                    c = "0" if (j == 0 and kl == 0) else vr(ACC(nt, qt))
                    bsrc = vr(Bo(4 * j + kl, qt)) if j < 2 else vr(Bf(kl & 1, qt))
                    asrc = ar(RES[j] + (kl * 4 + nt) * 4) if j in RES else ar(Af(kl & 1, nt))
                    mf.append(lambda kl=kl, nt=nt, qt=qt, c=c, bsrc=bsrc, asrc=asrc: a("v_mfma_f32_16x16x32_bf16 %s, %s, %s, %s" % (vr(ACC(nt, qt)), asrc, bsrc, c)))
            pre[12 * kl] = [lambda kl=kl: a.lwait("a%d_%d" % (j, kl))]
            if kl < 3 and AB_items(j, kl + 1): spread(fill, AB_items(j, kl + 1), 12 * kl + 1, 12 * kl + 10)
        return mf, pre, fill

    a.vwait("U0")
    a("s_barrier")
    for f in AB_items(0, 0): f()
    mf, pre, fill = head(0, True)
    def bar0():
        a.vwait("U1"); a("s_barrier")
    pre[36].append(bar0)
    spread(fill, AB_items(1, 0), 37, 46)
    run_gaps(48, mf, pre, fill)
    mf, pre, fill = head(1, False)
    if SPLIT:
        spread(fill, U_items(3), 1, 14)
        spread(fill, [(lambda s_=s_, qt=qt: o_store(s_, qt, 1)) for qt in range(3) for s_ in range(4)], 15, 47)
    else:
        spread(fill, U_items(3), 1, 34)
    run_gaps(48, mf, pre, fill)
    if SPLIT:
        assert a.vm[-8:] == ["U3"] * 8
        l = a.uid("L_osw")
        a("s_cmp_eq_u32 s%d, 0" % sP)
        a("s_cbranch_scc0 %s" % l)
        a("s_waitcnt vmcnt(8)")
        a.lab(l)
    else:
        a.vwait("OS")
    a.lwait_all()
    a("s_barrier")
    stamp(7)
    def ownA(off=0):
        a("s_lshl_b32 s%d, s%d, 7" % (sTmp, sB))
        a("s_lshl_b32 s3, s%d, 3" % sHP)
        a("s_add_u32 s%d, s%d, s3" % (sTmp, sTmp))
        a("s_add_u32 s%d, s%d, %d" % (sTmp, sTmp, FLAGB + off))
    def pollA(off=0):
        a("s_lshl_b32 s%d, s%d, 7" % (sTmp, sB))
        a("s_and_b32 s3, s%d, 12" % sHP)
        a("s_lshl_b32 s3, s3, 3")
        a("s_add_u32 s%d, s%d, s3" % (sTmp, sTmp))
        a("s_add_u32 s%d, s%d, %d" % (sTmp, sTmp, FLAGB + off))
    if opts.get('tdiag') == 1: stamp(1, True)
    publish(ownA, "A")
    if RES:
        for f in U_items(4): f()
        pull(2)
        a.vwait("U3")
        a.lwait_all()
        a("s_barrier")
        if SPLIT: publish(lambda: ownA(2048), "A1")
        for f in U_items(5): f()
        if not opts.get('pull3late'):
            pull(3)
            a.lwait_all()
            a("s_barrier")
        if not opts.get('u6late', True):
            for f in U_items(6): f()
    wait_flags(pollA, 4, "A")
    stamp(8)
    if opts.get('tdiag') == 1: stamp(2, True)
    EARLY = opts.get('oearly', True)
    for f in O_items(2): f()
    if opts.get('pull3late'):
        pull(3)
        a.lwait_all()
    o3 = O_items(3)
    n3 = opts.get('o3_first', 6)
    for f in o3[:n3]: f()
    late_first = o3[n3:] + ([] if RES else U_items(4))
    a.vwait("O2")
    a("s_barrier")
    if opts.get('tdiag') == 1: stamp(3, True)
    for f in AB_items(2, 0): f()
    sA1 = 74
    def early_A1():
        l = a.uid("L_ea")
        a("s_cmp_eq_u32 s%d, 0" % sW)
        a("s_cbranch_scc0 %s" % l)
        pollA(2048)
        a("s_mov_b32 s%d, s%d" % (sA1, sTmp))
        a("v_and_b32 v47, 3, v1")
        a("v_lshlrev_b32 v47, 3, v47")
        a("buffer_load_dwordx2 v[50:51], v47, s[%d:%d], s%d offen sc1" % (SWS, SWS + 3, sA1))
        a.lab(l)
    def check_A1():
        a("s_cmp_eq_u32 s%d, 0" % sW)
        a("s_cbranch_scc0 L_a1ok")
        a("s_mov_b32 s%d, 0" % sT)
        a.lab("L_a1loop")
        a("v_xor_b32 v50, v50, v2")
        a("v_xor_b32 v51, v51, v3")
        a("v_or_b32 v50, v50, v51")
        a("v_cmp_ne_u32 vcc, 0, v50")
        a("s_cbranch_vccz L_a1ok")
        a("s_add_u32 s%d, s%d, 1" % (sT, sT))
        a("s_cmp_gt_u32 s%d, 0x40000" % sT)
        a("s_cbranch_scc1 L_a1ok")
        a("buffer_load_dwordx2 v[50:51], v47, s[%d:%d], s%d offen sc1" % (SWS, SWS + 3, sA1))
        a("s_waitcnt vmcnt(0)")
        a("s_branch L_a1loop")
        a.lab("L_a1ok")
    assert RES or not SPLIT
    for j in range(2, 8):
        mf, pre, fill = head(j, True)
        if SPLIT and j == 2: fill.setdefault(0, []).append(early_A1)
        dma = []; dma_late = []
        if j < 7:
            def nb(j=j):
                a.vwait("O%d" % (j + 1))
                a.vwait("U%d" % (j + 1))
                if SPLIT and j == 3: check_A1()
                a("s_barrier")
            pre[36].append(nb)
            spread(fill, AB_items(j + 1, 0), 37, 47)
        if j == 2: dma += late_first
        if EARLY and j + 2 <= 7: dma_late += O_items(j + 2)
        if j >= 3:
            if not EARLY and j + 1 <= 7: dma += O_items(j + 1)
            if RES:
                if j == 5: dma += U_items(7)
            elif j + 2 <= 7: dma += U_items(j + 2)
        if RES and j == 2 and opts.get('u6late', True): dma += U_items(6)
        if dma: spread(fill, dma, 0, 24)
        if dma_late: spread(fill, dma_late, 37, 48)
        run_gaps(48, mf, pre, fill)
        if opts.get('tdiag') == 1: stamp(2 + j, True)
    stamp(9)
    if opts.get('tdiag') == 2: stamp(1, True)
    a("s_lshl_b32 s%d, s%d, 2" % (sPart, sB))
    a("s_add_u32 s%d, s%d, s%d" % (sPart, sPart, sL))
    a("s_lshl_b32 s%d, s%d, 2" % (sPart, sPart))
    a("s_lshr_b32 s3, s%d, 2" % sHP)
    a("s_add_u32 s%d, s%d, s3" % (sPart, sPart))
    a("s_mul_i32 s%d, s%d, 24" % (sPart, sPart))
    a("s_mul_i32 s3, s%d, 12" % sP)
    a("s_add_u32 s%d, s%d, s3" % (sPart, sPart))
    a("s_mul_i32 s3, s%d, 3" % sQH)
    a("s_add_u32 s%d, s%d, s3" % (sPart, sPart))
    a("s_lshl_b32 s%d, s%d, 10" % (sPart, sPart))
    a("s_add_u32 s%d, s%d, %d" % (sPart, sPart, P2BASE))
    k = 0
    for i in range(2):
        for qt in range(3):
            d = (52 if SPLIT else 100) + 4 * k
            for ab in range(2):
                o = ACC(2 * i + ab, qt)
                a("v_cvt_pk_bf16_f32 v%d, v%d, v%d" % (d + 2 * ab, o, o + 1))
                a("v_cvt_pk_bf16_f32 v%d, v%d, v%d" % (d + 2 * ab + 1, o + 2, o + 3))
            a("s_add_u32 s%d, s%d, %d" % (sTmp, sPart, (6 * i + qt) * 1024))
            a.vmem("buffer_store_dwordx4 %s, v%d, s[%d:%d], s%d offen%s" % (vr(d), vL16, SWS, SWS + 3, sTmp, PST), "P")
            k += 1
    if opts.get('tdiag') == 2: stamp(2, True)
    a("s_waitcnt vmcnt(0)")
    a.vm = []
    if opts.get('tdiag') == 2: stamp(3, True)
    a("s_barrier")
    if opts.get('tdiag') == 2: stamp(4, True)
    def ownB():
        a("s_lshl_b32 s%d, s%d, 2" % (sTmp, sB))
        a("s_add_u32 s%d, s%d, s%d" % (sTmp, sTmp, sL))
        a("s_lshl_b32 s%d, s%d, 7" % (sTmp, sTmp))
        a("s_lshr_b32 s3, s%d, 2" % sHP)
        a("s_lshl_b32 s3, s3, 3")
        a("s_add_u32 s%d, s%d, s3" % (sTmp, sTmp))
        a("s_add_u32 s%d, s%d, %d" % (sTmp, sTmp, FLAGB + 4096))
    def pollB():
        a("s_lshl_b32 s%d, s%d, 2" % (sTmp, sB))
        a("s_add_u32 s%d, s%d, s%d" % (sTmp, sTmp, sL))
        a("s_lshl_b32 s%d, s%d, 7" % (sTmp, sTmp))
        a("s_add_u32 s%d, s%d, %d" % (sTmp, sTmp, FLAGB + 4096))
    publish(ownB, "B")
    wait_flags(pollB, 4, "B")
    if opts.get('tdiag') == 2: stamp(5, True)
    a("s_lshl_b32 s%d, s%d, 2" % (sPart, sB))
    a("s_add_u32 s%d, s%d, s%d" % (sPart, sPart, sL))
    a("s_mul_i32 s%d, s%d, 96" % (sPart, sPart))
    a("s_lshr_b32 s3, s%d, 2" % sHP)
    a("s_mul_i32 s3, s3, 6")
    a("s_add_u32 s%d, s%d, s3" % (sPart, sPart))
    a("s_add_u32 s%d, s%d, s%d" % (sPart, sPart, sW))
    a("s_lshl_b32 s%d, s%d, 10" % (sPart, sPart))
    a("s_add_u32 s%d, s%d, %d" % (sPart, sPart, P2BASE))
    a("v_and_b32 v5, 15, v1")
    a("v_lshrrev_b32 v6, 4, v1")
    a("v_lshlrev_b32 v6, 3, v6")
    a("v_lshl_add_u32 v5, v5, 10, v6")
    a("s_mul_i32 s%d, s%d, %d" % (sOB, sB, 96 * 1024))
    a("s_lshl_b32 s3, s%d, 8" % sL)
    a("s_add_u32 s%d, s%d, s3" % (sOB, sOB))
    a("s_lshr_b32 s3, s%d, 2" % sHP)
    a("s_lshl_b32 s3, s3, 6")
    a("s_add_u32 s%d, s%d, s3" % (sOB, sOB))
    a("s_lshl_b32 s3, s%d, 14" % sW)
    a("s_add_u32 s%d, s%d, s3" % (sOB, sOB))
    R = lambda k, i: 64 + (k * 4 + i) * 4
    def fin_loads(k):
        for i in range(4):
            a("s_add_u32 s%d, s%d, %d" % (sTmp, sPart, (i * 24 + 4 * k) * 1024))
            a.vmem("buffer_load_dwordx4 %s, v%d, s[%d:%d], s%d offen%s" % (vr(R(k, i)), vL16, SWS, SWS + 3, sTmp, PLD), "R%d_%d" % (k, i))
    def fin_sum(k):
        AC = 160 + 8 * k
        for i in range(4):
            a.vwait("R%d_%d" % (k, i))
            for d in range(4):
                x = R(k, i) + d
                if i == 0:
                    a("v_lshlrev_b32 v%d, 16, v%d" % (AC + 2 * d, x))
                    a("v_and_b32 v%d, 0xffff0000, v%d" % (AC + 2 * d + 1, x))
                else:
                    a("v_lshlrev_b32 v%d, 16, v%d" % (vT[0], x))
                    a("v_and_b32 v%d, 0xffff0000, v%d" % (vT[1], x))
                    a("v_add_f32 v%d, v%d, v%d" % (AC + 2 * d, AC + 2 * d, vT[0]))
                    a("v_add_f32 v%d, v%d, v%d" % (AC + 2 * d + 1, AC + 2 * d + 1, vT[1]))
        for ab in range(2):
            a("v_cvt_pk_bf16_f32 v%d, v%d, v%d" % (AC + 4 * ab, AC + 4 * ab, AC + 4 * ab + 1))
            a("v_cvt_pk_bf16_f32 v%d, v%d, v%d" % (AC + 4 * ab + 1, AC + 4 * ab + 2, AC + 4 * ab + 3))
            a("s_add_u32 s%d, s%d, %d" % (sTmp, sOB, k * 4 * 16384 + ab * 32))
            a("buffer_store_dwordx2 %s, v5, s[%d:%d], s%d offen%s" % (vr(AC + 4 * ab, 2), SOUT, SOUT + 3, sTmp, opts.get('out_fl', "")))
    a("s_cmp_lt_u32 s%d, 2" % sW)
    a("s_cbranch_scc1 L_fin2")
    vm_save = list(a.vm)
    fin_loads(0)
    if opts.get('tdiag') == 2: stamp(6, True)
    fin_sum(0)
    a("s_branch L_fin_done")
    a.lab("L_fin2")
    a.vm = list(vm_save)
    fin_loads(0); fin_loads(1)
    if opts.get('tdiag') == 2: stamp(6, True)
    fin_sum(0); fin_sum(1)
    a.lab("L_fin_done")
    a.vm = []
    if opts.get('tdiag') == 2: stamp(7, True)
    if ST:
        a("s_waitcnt vmcnt(0)")
        stamp(10)
        a("s_cmp_eq_u32 s%d, 0" % sW)
        a("s_cbranch_scc0 L_st")
        a("s_mul_i32 s3, s2, %d" % (NSTAMP * 8))
        a("s_add_u32 s3, s3, 0x%x" % STAMPB)
        a("v_mov_b32 v2, 0")
        a("v_cmp_eq_u32 vcc, 0, v1")
        a("s_and_saveexec_b64 s[72:73], vcc")
        for i in range(11):
            a("v_mov_b32 v4, s%d" % (76 + 2 * i))
            a("v_mov_b32 v5, s%d" % (77 + 2 * i))
            a("buffer_store_dwordx2 v[4:5], v2, s[%d:%d], s3 offen offset:%d" % (SWS, SWS + 3, i * 8))
            a("s_waitcnt vmcnt(0)")
        if opts.get('dbgstamps'):
            for k, idx in enumerate(opts['dbgstamps']):
                a("v_mov_b32 v4, s%d" % (76 + 2 * idx))
                a("v_not_b32 v5, v4")
                a("buffer_atomic_umax v4, v2, s[%d:%d], 0 offen offset:%d" % (SDBG, SDBG + 3, 8 + 8 * k))
                a("buffer_atomic_umax v5, v2, s[%d:%d], 0 offen offset:%d" % (SDBG, SDBG + 3, 12 + 8 * k))
                a("s_waitcnt vmcnt(0)")
        a("s_mov_b64 exec, s[72:73]")
        a.lab("L_st")
    a("s_endpgm")
    for uid, buf in rare_blocks:
        rare(uid, buf)
    a.lab("L_end")
    a("s_endpgm")
    return a

def build(opts, verbose=False):
    k = gen(dict(opts))
    txt = header(["grid=(256,1,1) block=(256,1,1) lds=163840"], opts.get('comment', ""))
    lines, n = hazard.fix(k.lines, verbose, "g")
    errs = hazard.check_counters(lines, "g")
    for e in errs[:20]: print("ERR", e)
    if verbose: print("nops inserted:", n, "lines:", len(lines))
    txt += "\n".join(lines) + "\n"
    e = hazard.lint_srd(txt)
    assert not e, e
    txt += descriptor(KNAME, 512, 100, 256)
    return txt

if __name__ == "__main__":
    v = "-v" in sys.argv
    base = dict(touch=False, dspread=(2, 46), throttle=5, tlb=True, rot2=True, qmap2=True, qm2_burst=6)
    base['tail_throttle'] = False
    base.update(v1ahead=True, qm2_burst=6)
    base['throttle'] = 6
    base['tlb'] = False
    base['wsbase'] = 0x1C000000
    base.update(kpre=True, bgap=6, throttle=5)
    base.update(pull3late=True)
    comment = """; Fused multi-head attention block for fixed shapes B=16 Sq=96 D=512 H=32 Sk=1024 Dh=128 (bf16 in / bf16 out).
"""
    open("final.s", "w").write(build(dict(base, comment=comment), v))
    open("final_st.s", "w").write(build(dict(base, stamps=True)))
```

```python
import sys, math, struct
from asmlib import *
import hazard

C_SCALE = math.log2(math.e) / math.sqrt(128.0)
def fbits(x): return struct.unpack("<I", struct.pack("<f", x))[0]
PBASE = 0x0
OBASE = 0x0
P2BASE = 0x1000000
FLAGB = 0x2000000
STAMPB = 0x1F000000
NSTAMP = 12

class G(Asm):
    def __init__(self):
        super().__init__()
        self.vm = []; self.lg = []
    def vmem(self, s, tag):
        self(s); self.vm.append(tag)
    def vcount(self, tag):
        idx = max(i for i, t in enumerate(self.vm) if t == tag)
        n = len(self.vm) - 1 - idx
        self.vm = self.vm[idx + 1:]
        assert n <= 63
        return n
    def vwait(self, tag):
        if tag not in self.vm: return
        self("s_waitcnt vmcnt(%d)" % self.vcount(tag))
    def lds(self, s, tag):
        self(s); self.lg.append(tag)
        assert len(self.lg) <= 15, ("lds overflow", s)
    def lwait(self, tag):
        if tag not in self.lg: return
        idx = max(i for i, t in enumerate(self.lg) if t == tag)
        n = len(self.lg) - 1 - idx
        self.lg = self.lg[idx + 1:]
        self("s_waitcnt lgkmcnt(%d)" % n)
    def lwait_all(self):
        if self.lg:
            self("s_waitcnt lgkmcnt(0)"); self.lg = []

def run_gaps(n, mf, pre, fill):
    for g in range(n):
        for f in pre.get(g, []): f()
        mf[g]()
        for f in fill.get(g, []): f()
def spread(fill, items, g0, g1):
    n = len(items); m = g1 - g0
    for k, it in enumerate(items):
        g = g0 + (k * m) // n
        fill.setdefault(g, []).append(it)

def gen(opts):
    global OBASE, P2BASE, FLAGB
    wsb = opts.get('wsbase', 0)
    OBASE = wsb; P2BASE = wsb + 0x1000000; FLAGB = wsb + 0x1800000
    a = G()
    ST = opts.get('stamps')
    def cstamp(idx):
        a("s_memtime s[%d:%d]" % (76 + 2 * idx, 77 + 2 * idx))
    def stamp(idx, o=False):
        if not ST: return
        if opts.get('tdiag') and not o and idx not in (0, 10): return
        if (opts.get('odiag') or opts.get('q_stamps') or opts.get('s_stamps') or opts.get('qd') is not None) and not o and idx not in (0, 1, 10): return
        a("s_memrealtime s[%d:%d]" % (76 + 2 * idx, 77 + 2 * idx))
        a("s_waitcnt lgkmcnt(0)")
        a.lg = []
    NT = " nt" if opts.get('nt', True) else ""
    WNT = opts.get('wq_flags', ""); XNT = opts.get('x_flags', ""); WOF = opts.get('wo_flags', "")
    PST = opts.get('p_st', " sc1"); PLD = opts.get('p_ld', " sc1")
    ROT = opts.get('rot', True)
    T_LOG2 = opts.get('T', 8.0)
    vKd = [10, 11, 12, 13]; vVd = [14, 15]; vWd = 16; vXd = [17, 9]; aX = [7, 8]
    aK = [18, 19, 20, 21]; aV = list(range(22, 30)); aW = list(range(112, 120)); vWd2 = 33
    vMC = [34, 35, 36]; vT = list(range(37, 46))
    vWo = [30, 31]; vL16 = 32
    Sb = lambda buf, kt, qt: 52 + 24 * buf + (kt * 3 + qt) * 4
    P = lambda qt: 100 + 4 * qt
    O = lambda dt, qt: 152 + (dt * 3 + qt) * 4
    Xf = lambda ks, qt: 52 + (ks * 3 + qt) * 4
    Qa = lambda s, qt: (s * 3 + qt) * 4
    La = lambda qt: 48 + 4 * qt
    ONES = 60
    KPRE = opts.get('kpre', False)
    Kf = lambda s, kt, kb=0: (64 if kb == 0 else 128) + (s * 2 + kt) * 4
    Vf = lambda dt: 96 + 4 * dt
    Wf = lambda buf, dt: 128 + buf * 32 + dt * 4
    vr = lambda b, n=4: "v[%d:%d]" % (b, b + n - 1)
    ar = lambda b, n=4: "a[%d:%d]" % (b, b + n - 1)
    sW = 40; sH0 = 41; sB = 42; sQH = 43; sKV = 44; sCur = 45; sPrev = 46; sDK = 47; sWoff = 48; sT = 49
    sXo = 50; sP = 51; sC0 = 52; sWq = 53; sC = 54; sTmp = 55; sTmp2 = 56; sDV = 57
    sHP = 58; sW8k = 59; sW3k = 60; sCh = 61; sChX = 62; sWoB = 63; sR0 = 64; sPart = 65; sN = 66
    sNxt = 68; sCB = 69; sM0 = 70; sKVv = 73; sSK = 74; sSV = 75
    SX, SK, SV, SWQ, SWS, SWO, SOUT, SDBG = 20, 24, 28, 32, 36, 4, 8, 12

    a(kernel_begin(KNAME))
    a("s_cmp_ge_u32 s2, 256")
    a("s_cbranch_scc1 L_end")
    stamp(0)
    if opts.get('burn'):
        a("s_mov_b32 s3, 0")
        a.lab("L_burn")
        for g in range(16):
            r = 100 + 4 * (g % 6)
            a("v_mfma_f32_16x16x32_bf16 v[%d:%d], v[140:143], v[144:147], v[%d:%d]" % (r, r + 3, r, r + 3))
        a("s_add_u32 s3, s3, 1")
        a("s_cmp_lt_u32 s3, %d" % opts['burn'])
        a("s_cbranch_scc1 L_burn")
    a("s_load_dwordx16 s[52:67], s[0:1], 0")
    a("v_lshrrev_b32 v2, 6, v0")
    a("v_and_b32 v1, 63, v0")
    a("v_readfirstlane_b32 s%d, v2" % sW)
    a("v_lshrrev_b32 v2, 4, v1")
    a("v_and_b32 v3, 15, v1")
    for kk, reg in ((0, vWd), (1, vWd2)):
        a("v_add_u32 v4, %d, v2" % (4 * kk))
        a("v_lshlrev_b32 v4, 1, v4")
        a("v_xor_b32 v4, v3, v4")
        a("v_lshlrev_b32 v4, 4, v4")
        a("v_lshl_add_u32 v%d, v2, 13, v4" % reg)
    a("v_and_b32 v5, 7, v1")
    a("v_lshrrev_b32 v6, 3, v1")
    for jp in range(2):
        a("s_add_u32 s3, s%d, %d" % (sW, jp))
        a("s_and_b32 s3, s3, 1")
        a("s_lshl_b32 s3, s3, 2")
        a("v_add_u32 v4, s3, v2")
        a("v_xor_b32 v4, v5, v4")
        a("v_lshlrev_b32 v4, 4, v4")
        a("v_lshl_add_u32 v%d, v6, 10, v4" % vXd[jp])
    a("s_and_b32 s16, s2, 7")
    a("s_lshr_b32 s17, s2, 3")
    a("s_and_b32 s18, s16, 3")
    a("s_lshl_b32 s18, s18, 2")
    a("s_and_b32 s3, s17, 3")
    a("s_add_u32 s18, s18, s3")
    a("s_lshl_b32 s%d, s18, 1" % sH0)
    a("s_lshr_b32 s%d, s16, 2" % sB)
    a("s_lshl_b32 s%d, s%d, 3" % (sB, sB))
    a("s_lshr_b32 s17, s17, 2")
    a("s_add_u32 s%d, s%d, s17" % (sB, sB))
    if ROT:
        if opts.get('rot2'):
            a("s_add_u32 s3, s3, s17")
            a("s_and_b32 s3, s3, 3")
            a("s_lshl_b32 s19, s3, 1")
        else:
            a("s_lshl_b32 s3, s3, 1")
            a("s_add_u32 s3, s3, s17")
            a("s_and_b32 s19, s3, 7")
        a("s_and_b32 s17, s17, 3")
    else:
        a("s_mov_b32 s19, 0")
        a("s_mov_b32 s17, 0")
    a("s_lshr_b32 s%d, s%d, 1" % (sP, sW))
    a("s_and_b32 s%d, s%d, 1" % (sQH, sW))
    a("s_mul_i32 s%d, s%d, 96" % (sXo, sB))
    a("s_mul_i32 s3, s%d, 24" % sW)
    a("s_add_u32 s%d, s%d, s3" % (sXo, sXo))
    a("s_lshl_b32 s%d, s%d, 10" % (sXo, sXo))
    a("s_waitcnt lgkmcnt(0)")
    if opts.get('s_stamps'): stamp(2, True)
    srd(a, SWQ, 58, 0x400000)
    srd(a, SX, 52, 16 * 96 * 512 * 2)
    srd(a, SK, 54, 0x8000000)
    srd(a, SV, 56, 0x8000000)
    srd(a, SWO, 60, 0x400000)
    srd(a, SOUT, 62, 16 * 96 * 512 * 2)
    srd(a, SDBG, 64, 256)
    srd(a, SWS, 66, 0x20000000)
    a("s_mov_b32 s%d, s18" % sHP)
    a("s_mov_b32 s%d, s19" % sC0)
    a("s_mov_b32 s%d, s17" % sR0)
    a("s_lshl_b32 s%d, s%d, 18" % (sWq, sQH))
    a("s_add_u32 s3, s%d, s%d" % (sH0, sP))
    a("s_lshl_b32 s3, s3, 8")
    a("s_add_u32 s%d, s%d, s3" % (sWq, sWq))
    a("s_lshl_b32 s%d, s%d, 13" % (sW8k, sW))
    a("s_mul_i32 s%d, s%d, 3072" % (sW3k, sW))

    CB = [28672, 73728, 118784]
    QM2 = opts.get('qmap2', False)
    def cbase(i):
        if QM2: return CB[[0, 1, 2, 0, 1, 2, 1, 2][i]]
        return CB[(i + 1) % 3]
    def C_items(i):
        items = []
        def head():
            a("s_add_u32 s%d, s%d, %d" % (sCh, sC0, 0 if opts.get('qsame') else i))
            a("s_and_b32 s%d, s%d, 7" % (sCh, sCh))
            a("s_lshl_b32 s%d, s%d, 7" % (sChX, sCh))
            a("s_add_u32 s%d, s%d, s%d" % (sChX, sChX, sXo))
            a("s_lshl_b32 s%d, s%d, 19" % (sCh, sCh))
            a("s_add_u32 s%d, s%d, s%d" % (sCh, sCh, sWq))
        def wq(jj):
            if jj == 0: head()
            a("s_add_u32 m0, s%d, %d" % (sW8k, cbase(i) + jj * 1024))
            a("s_add_u32 s%d, s%d, %d" % (sTmp, sCh, 4 * jj * 8192))
            a.vmem("buffer_load_dwordx4 v%d, s[%d:%d], s%d offen%s lds" % (vWd2 if (jj >> 1) & 1 else vWd, SWQ, SWQ + 3, sTmp, WNT), "C%d" % i)
        def xx(j):
            a("s_add_u32 m0, s%d, %d" % (sW3k, cbase(i) + 32768 + j * 1024))
            a("s_add_u32 s%d, s%d, %d" % (sTmp, sChX, 8 * j * 1024))
            a.vmem("buffer_load_dwordx4 v%d, s[%d:%d], s%d offen%s lds" % (vXd[j & 1], SX, SX + 3, sTmp, XNT), "C%d" % i)
        for jj in range(8): items.append(lambda jj=jj: wq(jj))
        for j in range(3): items.append(lambda j=j: xx(j))
        return items
    for it in C_items(0): it()
    if opts.get('s_stamps'): stamp(3, True)
    if not opts.get('c1late', True):
        for it in C_items(1): it()
    if opts.get('s_stamps'): stamp(4, True)
    if opts.get('tlb', True):
        a("v_mov_b32 v5, 0")
        a("s_lshl_b32 s3, s%d, 5" % sB)
        a("s_add_u32 s3, s3, s%d" % sH0)
        a("s_add_u32 s3, s3, s%d" % sP)
        a("s_lshl_b32 s3, s3, 18")
        a.vmem("buffer_load_dword v46, v5, s[%d:%d], s3 offen nt" % (SV, SV + 3), "T")
        a("s_lshl_b32 s3, s%d, 17" % sH0)
        a.vmem("buffer_load_dword v47, v5, s[%d:%d], s3 offen" % (SWO, SWO + 3), "T")
        a("s_lshl_b32 s3, s%d, 4" % sB)
        a("s_add_u32 s3, s3, s%d" % sHP)
        a("s_mul_i32 s3, s3, %d" % (96 * 1024))
        a.vmem("buffer_load_dword v48, v5, s[%d:%d], s3 offen nt" % (SWS, SWS + 3), "T")

    for jj in range(4):
        a("v_add_u32 v4, %d, v2" % (4 * jj))
        a("v_xor_b32 v4, v3, v4")
        a("v_lshlrev_b32 v4, 4, v4")
        a("v_lshl_add_u32 v%d, v2, 8, v4" % vKd[jj])
    for jp in range(2):
        a("v_add_u32 v4, %d, v2" % (4 * jp))
        a("v_lshlrev_b32 v4, 1, v4")
        a("v_xor_b32 v4, v3, v4")
        a("v_lshlrev_b32 v4, 4, v4")
        a("v_lshl_add_u32 v%d, v2, 8, v4" % vVd[jp])
    a("s_lshl_b32 s%d, s%d, 13" % (sWoff, sP))
    a("s_lshl_b32 s3, s%d, 12" % sQH)
    a("s_add_u32 s%d, s%d, s3" % (sWoff, sWoff))
    a("s_lshl_b32 s%d, s%d, 5" % (sKV, sB))
    a("s_add_u32 s%d, s%d, s%d" % (sKV, sKV, sH0))
    a("s_add_u32 s%d, s%d, s%d" % (sKV, sKV, sP))
    a("s_lshl_b32 s%d, s%d, 18" % (sKV, sKV))
    a("s_add_u32 s%d, s%d, s3" % (sKV, sKV))
    a("s_mov_b32 s%d, s%d" % (sKVv, sKV))

    def part_items(tag, isv, slot_sgpr=None, slot_const=None):
        so = sKVv if isv else sKV
        def mk(jj):
            def f():
                mixed = opts.get('_mixed')
                if jj == 0 or mixed:
                    if slot_sgpr is not None:
                        a("s_add_u32 m0, s%d, s%d" % (slot_sgpr, sWoff))
                        if isv: a("s_add_u32 m0, m0, 16384")
                    else:
                        a("s_add_u32 m0, s%d, %d" % (sWoff, slot_const + (16384 if isv else 0)))
                    a("s_nop 0")
                if isv:
                    a.vmem("buffer_load_dwordx4 v%d, s[%d:%d], s%d offen offset:%d%s lds" % (vVd[jj & 1], SV, SV + 3, so, jj * 1024, NT), tag)
                else:
                    a.vmem("buffer_load_dwordx4 v%d, s[%d:%d], s%d offen offset:%d%s lds" % (vKd[jj], SK, SK + 3, so, jj * 1024, NT), tag)
                if jj == 3:
                    a("s_add_u32 s%d, s%d, %d" % (so, so, 0 if opts.get('kvsame') else 8192))
            return f
        return [mk(jj) for jj in range(4)]

    a("v_lshrrev_b32 v5, 2, v3")
    a("v_and_b32 v6, 3, v1")
    a("s_lshl_b32 s3, s%d, 13" % sP)
    for s in range(4):
        a("v_add_u32 v4, %d, v2" % (4 * s))
        a("v_xor_b32 v4, v4, v3")
        a("v_lshlrev_b32 v4, 4, v4")
        a("v_lshl_add_u32 v4, v3, 8, v4")
        a("v_add_u32 v%d, s3, v4" % aK[s])
    a("v_lshl_add_u32 v4, v2, 2, v5")
    a("v_and_b32 v0, 7, v4")
    a("v_lshlrev_b32 v0, 5, v0")
    a("v_lshl_add_u32 v0, v4, 8, v0")
    a("v_lshl_add_u32 v0, v6, 3, v0")
    a("s_add_u32 s%d, s3, 16384" % sTmp)
    a("v_add_u32 v%d, s%d, v0" % (aV[0], sTmp))
    a("s_lshl_b32 s3, s%d, 14" % sP)
    for dt in range(1, 8):
        a("v_xor_b32 v%d, %d, v%d" % (aV[dt], dt << 5, aV[0]))
    a("v_and_b32 v7, 1, v2")
    a("v_lshl_add_u32 v7, v7, 2, v5")
    a("v_lshl_add_u32 v4, v2, 3, v5")
    a("v_lshlrev_b32 v4, 8, v4")
    a("v_lshl_add_u32 v4, v7, 5, v4")
    a("v_lshl_add_u32 v4, v6, 3, v4")
    a("v_add_u32 v%d, s3, v4" % aW[0])
    for dt in range(1, 8):
        a("v_xor_b32 v%d, %d, v%d" % (aW[dt], dt << 5, aW[0]))
    a("v_lshrrev_b32 v4, 1, v3")
    a("s_mul_i32 s3, s%d, 6144" % sQH)
    a("s_add_u32 s3, s3, 32768")
    for ks in range(2):
        a("v_add_u32 v5, %d, v2" % (4 * ks))
        a("v_xor_b32 v5, v5, v4")
        a("v_lshlrev_b32 v5, 4, v5")
        a("v_lshl_add_u32 v5, v3, 7, v5")
        a("v_add_u32 v%d, s3, v5" % aX[ks])
    a("s_mov_b32 s%d, 0x%x" % (sC, fbits(C_SCALE)))
    a("v_mov_b32 v4, 0x3f803f80")
    for i in range(4):
        a("v_accvgpr_write_b32 a%d, v4" % (ONES + i))
    for i in range(12):
        a("v_accvgpr_write_b32 a%d, 0" % (48 + i))
    a("s_or_b32 s3, s2, s%d" % sW)
    a("s_cmp_eq_u32 s3, 0")
    a("s_cbranch_scc0 L_nononce")
    a("s_memrealtime s[%d:%d]" % (sN, sN + 1))
    a("s_waitcnt lgkmcnt(0)")
    a("s_or_b32 s%d, s%d, 1" % (sN, sN))
    a("v_mov_b32 v4, s%d" % sN)
    a("v_mov_b32 v5, s%d" % (sN + 1))
    a("v_mov_b32 v6, 0")
    a("buffer_store_dwordx2 v[4:5], v6, s[%d:%d], 0 offen sc1" % (SDBG, SDBG + 3))
    a.lab("L_nononce")

    tW = list(range(120, 128)); tX = [vT[4], vT[5]]
    opts['_mixed'] = True
    step_off = 0 if opts.get('kvsame') else 8192
    def touch_items():
        TF = opts.get('touch_flags', "")
        def prep():
            a("v_lshlrev_b32 v5, 7, v1")
            a("s_and_b32 s%d, s%d, 0xfffc0000" % (sTmp2, sKV))
            a("s_add_u32 s3, s%d, 1" % sQH)
            a("s_lshl_b32 s3, s3, 13")
            a("s_add_u32 s%d, s%d, s3" % (sTmp2, sTmp2))
        def tk():
            prep()
            a.vmem("buffer_load_dword v46, v5, s[%d:%d], s%d offen%s" % (SK, SK + 3, sTmp2, TF), "T")
        def tv():
            prep()
            a.vmem("buffer_load_dword v47, v5, s[%d:%d], s%d offen%s" % (SV, SV + 3, sTmp2, TF), "T")
        return [tk, tv]
    def x_read(i, ks, qt):
        if 'r' in opts.get('qabl', ''): return
        a.lds("ds_read_b128 %s, v%d offset:%d" % (vr(Xf(ks, qt)), tX[ks], qt * 2048), "x%d" % ks)
    def w_read(tl, dt, u):
        if 'r' in opts.get('qabl', ''): return
        a.lds("ds_read_b64_tr_b16 %s, v%d offset:%d" % (ar(Wf(tl, dt) + 2 * u, 2), tW[dt], tl * 8192 + u * 1024), "w%d_%d" % (tl, dt))
    W = lambda tl, dts: [(lambda tl=tl, dt=dt, u=u: w_read(tl, dt, u)) for dt in dts for u in range(2)]
    def q_addr(i):
        return [(lambda sp=sp: a("v_add_u32 v%d, %d, v%d" % (tW[sp], cbase(i), aW[sp]))) for sp in range(8)] + \
               [(lambda ks=ks: a("v_add_u32 v%d, %d, v%d" % (tX[ks], cbase(i), aX[ks]))) for ks in range(2)]
    def q_first(i):
        return [(lambda qt=qt: x_read(i, 0, qt)) for qt in range(3)] + W(0, range(0, 4))
    win = {}
    for i in range(0, 3 if QM2 else 5): win[i] = C_items(i + 3) if not opts.get('q_nodma') else []
    k0 = part_items("K0", False, slot_const=0)
    V1A = opts.get('v1ahead', False)
    kvall = part_items("V0", True, slot_const=0) + part_items("K1", False, slot_const=32768) + ([] if V1A else part_items("V1", True, slot_const=32768))
    assert QM2
    nb_ = opts.get('qm2_burst', 6)
    win[3] = kvall[:nb_]; win[4] = C_items(6); win[5] = C_items(7) + kvall[nb_:]
    if opts.get('qnokv'):
        win[3] = []; win[5] = C_items(7); k0 = []
    win[6] = part_items("K2", False, slot_const=65536) if not opts.get('qnokv') else []
    if KPRE: win[6] = win[6] + part_items("K3", False, slot_const=98304)
    win[7] = []
    TOUCH = opts.get('touch', True)
    pending = C_items(2) + k0 + (touch_items() if TOUCH else [])
    if opts.get('c1late', True):
        for it in C_items(1): it()
    if opts.get('s_stamps'): stamp(5, True)
    a.vwait("C0")
    stamp(1)
    a("s_barrier")
    if opts.get('qcyc'):
        a("s_memtime s[80:81]")
        a("s_waitcnt lgkmcnt(0)")
    for f in q_addr(0) + q_first(0): f()
    LB = 36
    for i in range(8):
        mf = []; pre = {}; fill = {}
        for tl in range(2):
            for dt in range(8):
                for qt in range(3):
                    c = "0" if (i == 0 and tl == 0) else vr(O(dt, qt))
                    mf.append(lambda tl=tl, dt=dt, qt=qt, c=c: a("v_mfma_f32_16x16x32_bf16 %s, %s, %s, %s" % (vr(O(dt, qt)), ar(Wf(tl, dt)), vr(Xf(tl, qt)), c)))
        for tl in range(2):
            for dt in (1, 3, 5, 7):
                g = tl * 24 + (dt - 1) * 3
                pre.setdefault(g, []).append(lambda tl=tl, dt=dt: a.lwait("w%d_%d" % (tl, dt)))
        spread(fill, W(0, range(4, 8)), 0, 6)
        spread(fill, [lambda qt=qt, i=i: x_read(i, 1, qt) for qt in range(3)] + W(1, range(0, 4)), 12, 20)
        spread(fill, W(1, range(4, 8)), 24, 30)
        qd = opts.get('qd')
        def late(i=i):
            a.lwait("w1_7")
            if qd == i: stamp(4, True)
            if i < 7: a.vwait("C%d" % (i + 1))
            if i == 7 and opts.get('fasttr', True) and KPRE: a.vwait("K1")
            if qd == i: stamp(5, True)
            if opts.get('q_stamps'): stamp(2 + i, True)
            if i in (2, 6) and not (opts.get('loopexit') and i == 2) and not opts.get('cyc') and not opts.get('qcyc'): stamp({2: 2, 6: 3}[i])
            if 'b' not in opts.get('qabl', ''): a("s_barrier")
            if qd == i: stamp(6, True)
        if qd == i:
            pre.setdefault(0, []).insert(0, lambda: stamp(1, True))
            pre.setdefault(12, []).insert(0, lambda: stamp(2, True))
            pre.setdefault(24, []).insert(0, lambda: stamp(3, True))
        if qd == i - 1:
            pre.setdefault(0, []).insert(0, lambda: stamp(7, True))
        pre.setdefault(LB, []).append(late)
        w = win.get(i, [])
        nfirst = (len(w) * (48 - LB)) // 46
        if i == 7: nfirst = len(w)
        if QM2 and i in (4, 5): nfirst = min(len(w), opts.get('qm2_first', 6))
        if 'd' in opts.get('qabl', ''): pending = []; w = []; nfirst = 0
        if pending: spread(fill, pending, 0, (opts.get('qm2_end', 14) if (QM2 and i in (5, 6)) else LB - 2))
        if nfirst and w: spread(fill, w[:nfirst], LB + 1, 48)
        pending = w[nfirst:]
        if i < 7:
            spread(fill, q_addr(i + 1), LB, LB + 3)
            spread(fill, q_first(i + 1), LB + 3, 48)
        run_gaps(48, mf, pre, fill)
    assert not pending and not a.lg, (pending, a.lg)
    if opts.get('qcyc'):
        a("s_memtime s[82:83]")
        a("s_waitcnt lgkmcnt(0)")
    opts['_mixed'] = False
    k = 0
    cvt_sets = [[112 + 4 * j + i for i in range(4)] for j in range(4)]
    work = [(sp, qt) for sp in range(4) for qt in range(3)]
    def q_cvt(n):
        sp, qt = work[n]; t = cvt_sets[n & 3]
        oa, ob = O(2 * sp, qt), O(2 * sp + 1, qt)
        a("v_cvt_pk_bf16_f32 v%d, v%d, v%d" % (t[0], oa, oa + 1))
        a("v_cvt_pk_bf16_f32 v%d, v%d, v%d" % (t[1], oa + 2, oa + 3))
        a("v_cvt_pk_bf16_f32 v%d, v%d, v%d" % (t[2], ob, ob + 1))
        a("v_cvt_pk_bf16_f32 v%d, v%d, v%d" % (t[3], ob + 2, ob + 3))
    def q_s32(n):
        t = cvt_sets[n & 3]
        a("v_permlane32_swap_b32 v%d, v%d" % (t[0], t[2]))
        a("v_permlane32_swap_b32 v%d, v%d" % (t[1], t[3]))
    def q_s16(n):
        t = cvt_sets[n & 3]
        a("v_permlane16_swap_b32 v%d, v%d" % (t[0], t[2]))
        a("v_permlane16_swap_b32 v%d, v%d" % (t[1], t[3]))
    def q_wr(n):
        sp, qt = work[n]; t = cvt_sets[n & 3]
        for i in range(4):
            a("v_accvgpr_write_b32 a%d, v%d" % (Qa(sp, qt) + i, t[i]))
    FASTTR = opts.get('fasttr', True) and KPRE
    def q_slot(n):
        if n < 12: q_cvt(n)
        if 0 <= n - 1 < 12: q_s32(n - 1)
        if 0 <= n - 2 < 12: q_s16(n - 2)
        if 0 <= n - 3 < 12: q_wr(n - 3)
    def wo_setup():
        it = []
        for jp in range(2):
            it += [lambda jp=jp: a("v_add_u32 v4, %d, v2" % (4 * jp)), lambda: a("v_lshlrev_b32 v4, 1, v4"), lambda: a("v_xor_b32 v4, v3, v4"),
                   lambda: a("v_lshlrev_b32 v4, 4, v4"), lambda jp=jp: a("v_lshl_add_u32 v%d, v2, 10, v4" % vWo[jp])]
        it += [lambda: a("v_lshlrev_b32 v%d, 4, v1" % vL16), lambda: a("s_lshl_b32 s%d, s%d, 17" % (sWoB, sH0)),
               lambda: a("s_lshl_b32 s3, s%d, 15" % sW), lambda: a("s_add_u32 s%d, s%d, s3" % (sWoB, sWoB))]
        return it
    if not FASTTR:
        for n in range(12 + 3): q_slot(n)
        for f in wo_setup(): f()
    stamp(4)
    if opts.get('cyc'):
        a("s_memtime s[80:81]")
        a("s_waitcnt lgkmcnt(0)")

    def k_read(s, kt, kb=0):
        if 'k' in opts.get('abl', ''): return
        a.lds("ds_read_b128 %s, v%d offset:%d" % (ar(Kf(s, kt, kb)), aK[s], kt * 4096), "k%d" % s)
    def v_read(dt, u):
        if 'v' in opts.get('abl', ''): return
        a.lds("ds_read_b64_tr_b16 %s, v%d offset:%d" % (ar(Vf(dt) + 2 * u, 2), aV[dt], u * 4096), "v%d" % dt)
    def qk_mfma(buf, m, kb=0):
        s, kt, qt = m // 6, (m % 6) // 3, m % 3
        c = "0" if s == 0 else vr(Sb(buf, kt, qt))
        a("v_mfma_f32_16x16x32_bf16 %s, %s, %s, %s" % (vr(Sb(buf, kt, qt)), ar(Kf(s, kt, kb)), ar(Qa(s, qt)), c))

    if FASTTR:
        def z_read(s_, kt): a.lds("ds_read_b128 %s, v%d offset:%d" % (ar(Kf(s_, kt, 0)), aK[s_], kt * 4096), "z%d" % s_)
        for s_ in range(4):
            for kt in range(2): z_read(s_, kt)
        for s_ in range(4):
            a("v_add_u32 v%d, 32768, v%d" % (aK[s_], aK[s_]))
        for n in range(6): q_slot(n)
        mf = [(lambda m=m: qk_mfma(0, m)) for m in range(24)]
        pre = {0: [lambda: a.lwait("z0")], 6: [lambda: a.lwait("z1")], 12: [lambda: a.lwait("z2")], 18: [lambda: a.lwait("z3")]}
        fill = {}
        for k_, n in enumerate(range(6, 15)):
            fill.setdefault(2 * k_ + 1 if k_ % 3 != 2 else 2 * k_, []).append(lambda n=n: q_slot(n))
        k1 = [(lambda s_=s_, kt=kt: k_read(s_, kt, 1)) for s_ in range(4) for kt in range(2)]
        spread(fill, k1[:4], 7, 11)
        spread(fill, k1[4:], 13, 17)
        spread(fill, [(lambda s_=s_: a("v_add_u32 v%d, 32768, v%d" % (aK[s_], aK[s_]))) for s_ in range(4)], 18, 20)
        spread(fill, wo_setup(), 19, 24)
        run_gaps(24, mf, pre, fill)
    else:
        for s in range(4):
            for kt in range(2): k_read(s, kt)
        for i in range(96):
            a("v_mov_b32 v%d, 0" % (152 + i))
        for m in range(24):
            if m % 6 == 0: a.lwait("k%d" % (m // 6))
            qk_mfma(0, m)
        for s in range(4):
            a("v_add_u32 v%d, 32768, v%d" % (aK[s], aK[s]))
        if KPRE:
            a.vwait("K1")
            a("s_barrier")
            for s in range(4):
                for kt in range(2): k_read(s, kt, 1)
            for s in range(4):
                a("v_add_u32 v%d, 32768, v%d" % (aK[s], aK[s]))
    for qt in range(3):
        s0, s1 = Sb(0, 0, qt), Sb(0, 1, qt)
        mx, t = vT[0], vT[1]
        a("v_max3_f32 v%d, v%d, v%d, v%d" % (mx, s0, s0 + 1, s0 + 2))
        a("v_max3_f32 v%d, v%d, v%d, v%d" % (t, s0 + 3, s1, s1 + 1))
        a("v_max3_f32 v%d, v%d, v%d, v%d" % (mx, mx, s1 + 2, s1 + 3))
        a("v_max_f32 v%d, v%d, v%d" % (mx, mx, t))
        a("v_mov_b32 v%d, v%d" % (t, mx))
        a("v_permlane16_swap_b32 v%d, v%d" % (t, mx))
        a("v_max_f32 v%d, v%d, v%d" % (mx, mx, t))
        a("v_mov_b32 v%d, v%d" % (t, mx))
        a("v_permlane32_swap_b32 v%d, v%d" % (t, mx))
        a("v_max_f32 v%d, v%d, v%d" % (mx, mx, t))
        a("v_mul_f32 v%d, s%d, v%d" % (vMC[qt], sC, mx))
    a("s_mov_b32 s%d, 0" % sCur)
    a("s_mov_b32 s%d, %d" % (sNxt, 65536 if KPRE else 32768))
    a("s_mov_b32 s%d, 131072" % sPrev)
    a("s_mov_b32 s%d, 0" % sT)
    assert V1A or not KPRE

    rare_blocks = []
    def step(vmn, dma_items, uid, buf, qk=True, throttle_ok=True, kread=True, first=False):
        BG = opts.get('bgap') if (qk and KPRE) else None
        def bar():
            a("s_waitcnt vmcnt(%d)" % vmn)
            if 'b' not in opts.get('abl', ''): a("s_barrier")
        V = lambda dts: [(lambda dt=dt, u=u: v_read(dt, u)) for dt in dts for u in range(2)]
        if BG is None:
            bar()
            if qk and not KPRE:
                for s in range(4):
                    for kt in range(2): k_read(s, kt)
            for f in V(range(0, 3)): f()
        AB = opts.get('abl', '')
        def fma(qt, j):
            if 'f' in AB: return
            r = Sb(buf, j >> 2, qt) + (j & 3)
            a("v_fma_f32 v%d, v%d, s%d, -v%d" % (r, r, sC, vMC[qt]))
        def ex(qt, j):
            if 'e' in AB: return
            r = Sb(buf, j >> 2, qt) + (j & 3)
            a("v_exp_f32 v%d, v%d" % (r, r))
        def cv(qt, j):
            if 'c' in AB: return
            kt, h = j >> 1, j & 1
            s0 = Sb(buf, kt, qt) + 2 * h
            a("v_cvt_pk_bf16_f32 v%d, v%d, v%d" % (P(qt) + 2 * kt + h, s0, s0 + 1))
        FM = lambda qt: [(lambda j=j: fma(qt, j)) for j in range(8)]
        EX = lambda qt: [(lambda j=j: ex(qt, j)) for j in range(8)]
        CV = lambda qt: [(lambda j=j: cv(qt, j)) for j in range(4)]
        allr = [Sb(buf, j >> 2, qt) + (j & 3) for qt in range(3) for j in range(8)]
        MX = []
        t = vT[0:4]
        for k in range(4):
            r = allr[6 * k:6 * k + 6]
            MX.append(lambda k=k, r=r: a("v_max3_f32 v%d, v%d, v%d, v%d" % (t[k], r[0], r[1], r[2])))
            MX.append(lambda k=k, r=r: a("v_max3_f32 v%d, v%d, v%d, v%d" % (t[k], t[k], r[3], r[4])))
        r5 = [allr[6 * k + 5] for k in range(4)]
        MX.append(lambda: a("v_max3_f32 v%d, v%d, v%d, v%d" % (t[0], t[0], t[1], r5[0])))
        MX.append(lambda: a("v_max3_f32 v%d, v%d, v%d, v%d" % (t[2], t[2], t[3], r5[1])))
        MX.append(lambda: a("v_max3_f32 v%d, v%d, v%d, v%d" % (t[0], t[0], r5[2], r5[3])))
        MX.append(lambda: a("v_max_f32 v%d, v%d, v%d" % (t[0], t[0], t[2])))
        if 'm' in AB: MX = [lambda: None]
        def chk():
            if 'm' in AB:
                a.lab("L_cont_%s" % uid); return
            a("v_cmp_lt_f32 vcc, 0x%x, v%d" % (fbits(T_LOG2), t[0]))
            a("s_cbranch_vccnz L_rare_%s" % uid)
            a.lab("L_cont_%s" % uid)
        rare_blocks.append((uid, buf))
        def pv(g):
            qt, k = g // 9, g % 9
            if k == 0:
                a("v_mfma_f32_16x16x32_bf16 %s, %s, %s, %s" % (ar(La(qt)), ar(ONES), vr(P(qt)), "0" if first else ar(La(qt))))
            else:
                dt = k - 1
                a("v_mfma_f32_16x16x32_bf16 %s, %s, %s, %s" % (vr(O(dt, qt)), ar(Vf(dt)), vr(P(qt)), "0" if first else vr(O(dt, qt))))
        def slots():
            if KPRE:
                a("s_mov_b32 s%d, s%d" % (sPrev, sCur))
                a("s_add_u32 s%d, s%d, 32768" % (sCur, sCur))
                a("s_cmp_eq_u32 s%d, 163840" % sCur)
                a("s_cselect_b32 s%d, 0, s%d" % (sCur, sCur))
                a("s_sub_u32 s%d, s%d, s%d" % (sDV, sCur, sPrev))
                a("s_mov_b32 s3, s%d" % sNxt)
                a("s_add_u32 s%d, s%d, 32768" % (sNxt, sNxt))
                a("s_cmp_eq_u32 s%d, 163840" % sNxt)
                a("s_cselect_b32 s%d, 0, s%d" % (sNxt, sNxt))
                a("s_sub_u32 s%d, s%d, s3" % (sDK, sNxt))
            else:
                a("s_mov_b32 s%d, s%d" % (sPrev, sCur))
                a("s_mov_b32 s%d, s%d" % (sCur, sNxt))
                a("s_add_u32 s%d, s%d, 32768" % (sNxt, sNxt))
                a("s_cmp_eq_u32 s%d, 163840" % sNxt)
                a("s_cselect_b32 s%d, 0, s%d" % (sNxt, sNxt))
                a("s_sub_u32 s%d, s%d, s%d" % (sDK, sNxt, sCur))
                a("s_sub_u32 s%d, s%d, s%d" % (sDV, sCur, sPrev))
        ADDR = [(lambda r=r: a("v_add_u32 v%d, s%d, v%d" % (r, sDK, r))) for r in aK] + \
               [(lambda r=r: a("v_add_u32 v%d, s%d, v%d" % (r, sDV, r))) for r in aV]
        if qk:
            for f in FM(0): f()
            kb_use = (buf ^ 1) if KPRE else 0
            mf = [(lambda m=m: qk_mfma(buf ^ 1, m, kb_use)) for m in range(24)] + [(lambda g=g: pv(g)) for g in range(27)]
            pre = {0: [lambda: a.lwait("k0")], 6: [lambda: a.lwait("k1")], 12: [lambda: a.lwait("k2")], 18: [lambda: a.lwait("k3")],
                   25: [lambda: a.lwait("v3")], 29: [lambda: a.lwait("v7")]}
            fill = {}
            spread(fill, FM(1) + FM(2), 0, 6)
            spread(fill, MX, 6, 10)
            if BG is None:
                spread(fill, V(range(3, 5)), 6, 10)
            fill.setdefault(9, []).append(chk)
            if BG is not None:
                pre.setdefault(BG, []).insert(0, bar)
                spread(fill, V(range(0, 3)), BG, BG + 4)
                spread(fill, V(range(3, 6)), BG + 6, BG + 11)
                fill.setdefault(18, []).append(lambda: a.lwait("v1"))
                spread(fill, V(range(6, 8)), 19, 23)
                spread(fill, EX(0) + CV(0), 10, 19)
                spread(fill, EX(1) + CV(1), 19, 31)
                spread(fill, EX(2) + CV(2), 31, 41)
            elif opts.get('reb', True):
                spread(fill, EX(0) + CV(0), 10, 19)
                spread(fill, V(range(5, 6)), 12, 14)
                spread(fill, V(range(6, 7)), 18, 20)
                fill.setdefault(21, []).append(lambda: a.lwait("v0"))
                spread(fill, V(range(7, 8)), 21, 23)
                spread(fill, EX(1) + CV(1), 19, 31)
                spread(fill, EX(2) + CV(2), 31, 41)
            else:
                spread(fill, EX(0) + CV(0) + EX(1), 10, 18)
                spread(fill, V(range(5, 6)), 12, 14)
                spread(fill, V(range(6, 7)), 18, 20)
                spread(fill, CV(1) + EX(2), 18, 24)
                fill.setdefault(21, []).append(lambda: a.lwait("v0"))
                spread(fill, V(range(7, 8)), 21, 23)
                spread(fill, CV(2), 24, 27)
            if KPRE and kread:
                spread(fill, [(lambda s_=s_, kt=kt: k_read(s_, kt, buf)) for s_ in range(4) for kt in range(2)], 33, 45)
            d0, d1 = opts.get('dspread', (26, 42))
            if BG is not None: d0 = max(d0, BG + 1)
            TH = opts.get('throttle')
            if TH and throttle_ok:
                pat = TH if isinstance(TH, (list, tuple)) else [TH]
                dma_items = [(lambda f=f, th=pat[k % len(pat)]: (a("s_waitcnt vmcnt(%d)" % (th - 1)), f())) for k, f in enumerate(dma_items)]
            spread(fill, dma_items, d0, d1)
            fill.setdefault(max(41, d1 - 1), []).append(slots)
            spread(fill, ADDR, max(42, d1), 51) if d1 < 50 else spread(fill, ADDR, 50, 51)
            run_gaps(51, mf, pre, fill)
        else:
            for f in V(range(3, 7)): f()
            for f in FM(0) + FM(1) + FM(2) + MX: f()
            chk()
            a.lwait("v3")
            for f in V(range(7, 8)): f()
            for f in EX(0) + CV(0): f()
            mf = [(lambda g=g: pv(g)) for g in range(27)]
            pre = {1: [lambda: a.lwait("v3")], 5: [lambda: a.lwait("v7")]}
            fill = {}
            spread(fill, EX(1) + CV(1), 0, 8)
            spread(fill, EX(2) + CV(2), 9, 17)
            spread(fill, dma_items, 18, 26)
            run_gaps(27, mf, pre, fill)
        assert KPRE or not a.lg, a.lg

    def rare(uid, buf):
        a.lab("L_rare_%s" % uid)
        for qt in range(3):
            s0, s1 = Sb(buf, 0, qt), Sb(buf, 1, qt)
            mx, t = vT[4], vT[5]
            a("v_max3_f32 v%d, v%d, v%d, v%d" % (mx, s0, s0 + 1, s0 + 2))
            a("v_max3_f32 v%d, v%d, v%d, v%d" % (t, s0 + 3, s1, s1 + 1))
            a("v_max3_f32 v%d, v%d, v%d, v%d" % (mx, mx, s1 + 2, s1 + 3))
            a("v_max3_f32 v%d, v%d, v%d, 0" % (mx, mx, t))
            a("v_mov_b32 v%d, v%d" % (t, mx))
            a("v_permlane16_swap_b32 v%d, v%d" % (t, mx))
            a("v_max_f32 v%d, v%d, v%d" % (mx, mx, t))
            a("v_mov_b32 v%d, v%d" % (t, mx))
            a("v_permlane32_swap_b32 v%d, v%d" % (t, mx))
            a("v_max_f32 v%d, v%d, v%d" % (mx, mx, t))
            a("v_add_f32 v%d, v%d, v%d" % (vMC[qt], vMC[qt], mx))
            for j in range(4):
                a("v_sub_f32 v%d, v%d, v%d" % (s0 + j, s0 + j, mx))
                a("v_sub_f32 v%d, v%d, v%d" % (s1 + j, s1 + j, mx))
            a("v_sub_f32 v%d, 0, v%d" % (t, mx))
            a("v_exp_f32 v%d, v%d" % (t, t))
            a("s_nop 0")
            for dt in range(8):
                for j in range(4):
                    a("v_mul_f32 v%d, v%d, v%d" % (O(dt, qt) + j, t, O(dt, qt) + j))
            for j in range(4):
                a("v_accvgpr_read_b32 v%d, a%d" % (mx, La(qt) + j))
                a("v_mul_f32 v%d, v%d, v%d" % (mx, t, mx))
                a("v_accvgpr_write_b32 a%d, v%d" % (La(qt) + j, mx))
        a("s_branch L_cont_%s" % uid)

    saved_vm = list(a.vm)
    def dma_slots():
        a("s_add_u32 s%d, s%d, %d" % (sSK, sCur, 131072 if KPRE else 98304))
        a("s_cmp_ge_u32 s%d, 163840" % sSK)
        a("s_cselect_b32 s3, 163840, 0")
        a("s_sub_u32 s%d, s%d, s3" % (sSK, sSK))
        a("s_add_u32 s%d, s%d, %d" % (sSV, sCur, 32768 if V1A else 65536))
        a("s_cmp_ge_u32 s%d, 163840" % sSV)
        a("s_cselect_b32 s3, 163840, 0")
        a("s_sub_u32 s%d, s%d, s3" % (sSV, sSV))
    def kv_iter_items(k=True, v=True, tk="Kx", tv="Vx"):
        it = []
        if V1A:
            if v: it += part_items(tv, True, slot_sgpr=sSV)
            if k: it += part_items(tk, False, slot_sgpr=sSK)
        else:
            if k: it += part_items(tk, False, slot_sgpr=sSK)
            if v: it += part_items(tv, True, slot_sgpr=sSV)
        f0 = it[0]
        it[0] = lambda: (dma_slots(), f0())
        return it
    def loop(tag, th):
        opts['throttle'] = th
        if FASTTR:
            step(4 if V1A else 8, kv_iter_items(), "f0" + tag, 0, first=True)
            step(4 if V1A else 8, kv_iter_items(), "f1" + tag, 1)
            a("s_mov_b32 s%d, 2" % sT)
        a.lab("L_loop%s" % tag)
        step(4 if V1A else 8, kv_iter_items(), "m0" + tag, 0)
        step(4 if V1A else 8, kv_iter_items(), "m1" + tag, 1)
        a("s_add_u32 s%d, s%d, 2" % (sT, sT))
        a("s_cmp_lt_u32 s%d, 28" % sT)
        a("s_cbranch_scc1 L_loop%s" % tag)
    if 'throttle_odd' in opts:
        th_e, th_o = opts['throttle'], opts['throttle_odd']
        a("s_getreg_b32 s3, hwreg(HW_REG_XCC_ID, 0, 1)")
        a("s_cmp_eq_u32 s3, 1")
        a("s_cbranch_scc1 L_loop_o")
        loop("_e", th_e)
        a("s_branch L_loop_done")
        loop("_o", th_o)
        a.lab("L_loop_done")
    else:
        loop("", opts.get('throttle'))
    if opts.get('loopexit'): stamp(2, True)
    a.vm = (["V28"] * 4 + ["K30"] * 4) if V1A else (["K30"] * 4 + ["V29"] * 4)

    USLOT = [65536, 98304, 131072]
    sL = sR0
    sBi = 71
    SPLIT = opts.get('split', False)
    def um(j): return (0 if j < 2 else ((j - 1) if j < 5 else (j - 4))) if SPLIT else (j >> 1)
    def upar(j): return (j if j < 2 else (0 if j < 5 else 1)) if SPLIT else (j & 1)
    def pair_of(j):
        m = um(j)
        if m == 0:
            a("s_mov_b32 s%d, s%d" % (sTmp2, sL))
        else:
            a("s_add_u32 s%d, s%d, %d" % (sTmp2, sBi, m - 1))
            a("s_cmp_ge_u32 s%d, 3" % sTmp2)
            a("s_cselect_b32 s3, 3, 0")
            a("s_sub_u32 s%d, s%d, s3" % (sTmp2, sTmp2))
            a("s_add_u32 s%d, s%d, s%d" % (sTmp2, sTmp2, sL))
            a("s_add_u32 s%d, s%d, 1" % (sTmp2, sTmp2))
            a("s_and_b32 s%d, s%d, 3" % (sTmp2, sTmp2))
    def U_items(j):
        def one(jj):
            if jj == 0:
                pair_of(j)
                a("s_and_b32 s3, s%d, 12" % sHP)
                a("s_add_u32 s%d, s%d, s3" % (sTmp2, sTmp2))
                a("s_lshl_b32 s%d, s%d, 1" % (sTmp2, sTmp2))
                a("s_add_u32 s%d, s%d, %d" % (sTmp2, sTmp2, upar(j)))
                a("s_lshl_b32 s%d, s%d, 17" % (sCB, sTmp2))
                a("s_lshl_b32 s3, s%d, 15" % sW)
                a("s_add_u32 s%d, s%d, s3" % (sCB, sCB))
                a("s_lshl_b32 s3, s%d, 8" % sL)
                a("s_add_u32 s%d, s%d, s3" % (sCB, sCB))
            a("s_add_u32 m0, s%d, %d" % (sW8k, USLOT[j % 3] + jj * 1024))
            a("s_add_u32 s%d, s%d, %d" % (sTmp, sCB, 4 * jj * 1024))
            a.vmem("buffer_load_dwordx4 v%d, s[%d:%d], s%d offen%s lds" % (vWo[jj & 1], SWO, SWO + 3, sTmp, WOF), "U%d" % j)
        return [(lambda jj=jj: one(jj)) for jj in range(8)]
    sOB = 72
    def O_items(j):
        def one(k):
            if k == 0:
                pair_of(j)
                a("s_and_b32 s3, s%d, 12" % sHP)
                a("s_add_u32 s%d, s%d, s3" % (sTmp2, sTmp2))
                a("s_lshl_b32 s%d, s%d, 1" % (sTmp2, sTmp2))
                a("s_add_u32 s%d, s%d, %d" % (sTmp2, sTmp2, upar(j)))
                a("s_lshl_b32 s3, s%d, 5" % sB)
                a("s_add_u32 s%d, s%d, s3" % (sTmp2, sTmp2))
                a("s_mul_i32 s%d, s%d, 24576" % (sOB, sTmp2))
                a("s_mul_i32 s3, s%d, 6144" % sW)
                a("s_add_u32 s%d, s%d, s3" % (sOB, sOB))
                if OBASE: a("s_add_u32 s%d, s%d, %d" % (sOB, sOB, OBASE))
                a("s_mul_i32 s%d, s%d, 6144" % (sM0, sW))
            a("s_add_u32 m0, s%d, %d" % (sM0, (j & 1) * 24576 + k * 1024))
            a("s_add_u32 s%d, s%d, %d" % (sTmp, sOB, k * 1024))
            a.vmem("buffer_load_dwordx4 v%d, s[%d:%d], s%d offen%s lds" % (vL16, SWS, SWS + 3, sTmp, PLD), "O%d" % j)
        return [(lambda k=k: one(k)) for k in range(6)]
    def nonce_load():
        a("v_mov_b32 v4, 0")
        a.vmem("buffer_load_dwordx2 v[2:3], v4, s[%d:%d], 0 offen sc1" % (SDBG, SDBG + 3), "N")
    a("s_and_b32 s%d, s%d, 3" % (sL, sHP))
    a("s_and_b32 s%d, s%d, 7" % (sBi, sB))
    a("s_cmp_ge_u32 s%d, 6" % sBi)
    a("s_cselect_b32 s3, 6, 0")
    a("s_sub_u32 s%d, s%d, s3" % (sBi, sBi))
    a("s_cmp_ge_u32 s%d, 3" % sBi)
    a("s_cselect_b32 s3, 3, 0")
    a("s_sub_u32 s%d, s%d, s3" % (sBi, sBi))
    TT = opts.get('tail_throttle', True)
    if V1A and KPRE:
        a.vm = ["V28"] * 4 + ["K31"] * 4
        step(a.vcount("V28"), kv_iter_items(k=False, tv="V29") + U_items(0), "t0", 0, throttle_ok=TT)
        step(a.vcount("V29"), kv_iter_items(k=False, tv="V30") + U_items(1), "t1", 1, throttle_ok=TT)
        step(a.vcount("V30"), kv_iter_items(k=False, tv="V31") + U_items(2), "t2", 0, throttle_ok=False, kread=False)
        a.lwait_all()
        step(a.vcount("V31"), [nonce_load], "t3", 1, qk=False)
    elif V1A:
        step(a.vcount("V28"), kv_iter_items(tk="K31", tv="V29") + U_items(0), "t0", 0, throttle_ok=TT)
        step(a.vcount("V29"), kv_iter_items(k=False, tv="V30") + U_items(1), "t1", 1, throttle_ok=TT)
        n = max(a.vcount("V30"), 0)
        step(n, kv_iter_items(k=False, tv="V31") + U_items(2), "t2", 0, throttle_ok=False)
        step(a.vcount("V31"), [nonce_load], "t3", 1, qk=False)
    else:
        step(8, kv_iter_items(tk="K31", tv="V30") + U_items(0), "t0", 0, throttle_ok=TT)
        n = a.vcount("V29")
        step(n, kv_iter_items(k=False, tv="V31") + U_items(1), "t1", 1, throttle_ok=TT)
        n = a.vcount("V30")
        step(n, U_items(2), "t2", 0, throttle_ok=False)
        n = a.vcount("V31")
        step(n, [nonce_load], "t3", 1, qk=False)
    stamp(5)
    if opts.get('cyc'):
        a("s_memtime s[82:83]")
        a("s_waitcnt lgkmcnt(0)")

    F = lambda s, qt: 52 + (s * 3 + qt) * 4
    for qt in range(3):
        a("v_accvgpr_read_b32 v%d, a%d" % (vT[6 + qt], La(qt)))
    for qt in range(3):
        a("v_rcp_f32 v%d, v%d" % (vT[6 + qt], vT[6 + qt]))
    a("s_lshl_b32 s%d, s%d, 5" % (sPart, sB))
    a("s_add_u32 s%d, s%d, s%d" % (sPart, sPart, sH0))
    a("s_add_u32 s%d, s%d, s%d" % (sPart, sPart, sP))
    a("s_mul_i32 s%d, s%d, 6" % (sPart, sPart))
    a("s_mul_i32 s3, s%d, 3" % sQH)
    a("s_add_u32 s%d, s%d, s3" % (sPart, sPart))
    a("s_lshl_b32 s%d, s%d, 12" % (sPart, sPart))
    if OBASE: a("s_add_u32 s%d, s%d, %d" % (sPart, sPart, OBASE))
    def o_store(s_, qt, who):
        d = F(s_, qt)
        txt = "buffer_store_dwordx4 %s, v%d, s[%d:%d], s%d offen offset:%d%s" % (vr(d), vL16, SWS, SWS + 3, sTmp, s_ * 1024, PST)
        if not SPLIT:
            a("s_add_u32 s%d, s%d, %d" % (sTmp, sPart, qt * 4096)); a.vmem(txt, "OS"); return
        l = a.uid("L_os")
        a("s_cmp_eq_u32 s%d, %d" % (sP, who))
        a("s_cbranch_scc0 %s" % l)
        a("s_add_u32 s%d, s%d, %d" % (sTmp, sPart, qt * 4096))
        a(txt)
        a.lab(l)
    if not opts.get('noexbar', True): a("s_barrier")
    a("s_mul_i32 s3, s%d, 12288" % sW)
    a("v_add_u32 v4, s3, v%d" % vL16)
    for qt in range(3):
        for s in range(4):
            d = F(s, qt)
            for ab in range(2):
                o = O(2 * s + ab, qt)
                for j in range(0, 4, 2):
                    a("v_pk_mul_f32 v[%d:%d], v[%d:%d], v[%d:%d] op_sel_hi:[1,0]" % (o + j, o + j + 1, o + j, o + j + 1, vT[6 + qt] & ~1, (vT[6 + qt] & ~1) + 1)) if False else None
                for j in range(4):
                    a("v_mul_f32 v%d, v%d, v%d" % (o + j, vT[6 + qt], o + j))
                a("v_cvt_pk_bf16_f32 v%d, v%d, v%d" % (d + 2 * ab, o, o + 1))
                a("v_cvt_pk_bf16_f32 v%d, v%d, v%d" % (d + 2 * ab + 1, o + 2, o + 3))
            o_store(s, qt, 0)
            a.lds("ds_write_b128 v4, %s offset:%d" % (vr(d), (s * 3 + qt) * 1024), "ex")
    a.lwait_all()
    a("s_barrier")
    Bo = lambda ks, qt: 152 + (ks * 3 + qt) * 4
    a("s_mul_i32 s3, s%d, 12288" % sQH)
    a("v_add_u32 v4, s3, v%d" % vL16)
    n = 0
    for pp in range(2):
        for s in range(4):
            for qt in range(3):
                if n == 12: a.lwait_all()
                a.lds("ds_read_b128 %s, v4 offset:%d" % (vr(Bo(4 * pp + s, qt)), pp * 24576 + (s * 3 + qt) * 1024), "bo")
                n += 1
    aO = [[34 + 4 * bb + nt for nt in range(4)] for bb in range(3)]
    a("s_lshl_b32 s3, s%d, 7" % sP)
    a("v_xor_b32 v%d, s3, v0" % aO[0][0])
    for nt in range(1, 4):
        a("v_xor_b32 v%d, %d, v%d" % (aO[0][nt], nt << 5, aO[0][0]))
    for bb in (1, 2):
        for nt in range(4):
            a("v_add_u32 v%d, %d, v%d" % (aO[bb][nt], 65536 * bb, aO[0][nt]))
    vOB = 46
    a("s_mul_i32 s3, s%d, 12288" % sQH)
    a("v_add_u32 v%d, s3, v%d" % (vOB, vL16))
    a.lwait_all()
    stamp(6)

    ACC = lambda nt, qt: (100 if SPLIT else 52) + (nt * 3 + qt) * 4
    Af = lambda buf, nt: 64 + buf * 16 + nt * 4
    Bf = lambda buf, qt: (52 if SPLIT else 100) + buf * 12 + qt * 4
    def a_read(j, kl, nt, u):
        base = USLOT[j % 3] + kl * 8192
        bb, off = base >> 16, base & 0xffff
        a.lds("ds_read_b64_tr_b16 %s, v%d offset:%d" % (ar(Af(kl & 1, nt) + 2 * u, 2), aO[bb][nt], off + u * 4096), "a%d_%d" % (j, kl))
    def b_read(j, kl, qt):
        a.lds("ds_read_b128 %s, v%d offset:%d" % (vr(Bf(kl & 1, qt)), vOB, (j & 1) * 24576 + (qt * 4 + kl) * 1024), "a%d_%d" % (j, kl))
    def AB_items(j, kl):
        it = []
        if j >= 2: it += [(lambda qt=qt: b_read(j, kl, qt)) for qt in range(3)]
        if j not in RES: it += [(lambda nt=nt, u=u: a_read(j, kl, nt, u)) for nt in range(4) for u in range(2)]
        return it
    RES = {2: 128, 3: 192} if opts.get('pull', True) else {}
    def pull(j):
        n = 0
        for kl in range(4):
            base = USLOT[j % 3] + kl * 8192
            bb, off = base >> 16, base & 0xffff
            for nt in range(4):
                for u in range(2):
                    if len(a.lg) >= 14: a.lwait(a.lg[7])
                    a.lds("ds_read_b64_tr_b16 %s, v%d offset:%d" % (ar(RES[j] + (kl * 4 + nt) * 4 + 2 * u, 2), aO[bb][nt], off + u * 4096), "p%d_%d" % (j, n))
                    n += 1

    def publish(own_off_code, uid):
        a("s_cmp_eq_u32 s%d, 0" % sW)
        a("s_cbranch_scc0 L_pskip_%s" % uid)
        a("s_mov_b32 s%d, 0" % sT)
        a.lab("L_nonce_%s" % uid)
        a("s_add_u32 s%d, s%d, 1" % (sT, sT))
        a("s_cmp_gt_u32 s%d, 0x40000" % sT)
        a("s_cbranch_scc1 L_pskip_%s" % uid)
        a("v_or_b32 v4, v2, v3")
        a("v_cmp_eq_u32 vcc, 0, v4")
        a("s_cbranch_vccz L_nok_%s" % uid)
        a("s_sleep 2")
        a("v_mov_b32 v4, 0")
        a("buffer_load_dwordx2 v[2:3], v4, s[%d:%d], 0 offen sc1" % (SDBG, SDBG + 3))
        a("s_waitcnt vmcnt(0)")
        a("s_branch L_nonce_%s" % uid)
        a.lab("L_nok_%s" % uid)
        own_off_code()
        a("v_mov_b32 v4, 0")
        a("buffer_store_dwordx2 v[2:3], v4, s[%d:%d], s%d offen sc1" % (SWS, SWS + 3, sTmp))
        a.lab("L_pskip_%s" % uid)
    EP = opts.get('epoll', True)
    def early_poll(poll_off_code, uid):
        a("v_and_b32 v47, 3, v1")
        a("v_lshlrev_b32 v47, 3, v47")
        a("s_cmp_eq_u32 s%d, 0" % sW)
        a("s_cbranch_scc0 L_ep_%s" % uid)
        poll_off_code()
        a("buffer_load_dwordx2 v[50:51], v47, s[%d:%d], s%d offen sc1" % (SWS, SWS + 3, sTmp))
        a.lab("L_ep_%s" % uid)
    def wait_flags(poll_off_code, nfl, uid, own=None):
        a("s_cmp_eq_u32 s%d, 0" % sW)
        a("s_cbranch_scc0 L_skip_%s" % uid)
        if own is not None:
            own()
            a("v_xor_b32 v50, v50, v2")
            a("v_xor_b32 v51, v51, v3")
            a("v_or_b32 v50, v50, v51")
            a("v_cmp_ne_u32 vcc, s3, v47")
            a("v_cndmask_b32 v50, 0, v50, vcc")
            a("v_cmp_ne_u32 vcc, 0, v50")
            a("s_cbranch_vccz L_skip_%s" % uid)
        a("s_mov_b32 s%d, 0" % sT)
        poll_off_code()
        a("v_and_b32 v5, %d, v1" % (nfl - 1))
        a("v_lshlrev_b32 v5, 3, v5")
        a("buffer_load_dwordx2 v[6:7], v5, s[%d:%d], s%d offen sc1" % (SWS, SWS + 3, sTmp))
        a.lab("L_poll_%s" % uid)
        a("s_add_u32 s%d, s%d, 1" % (sT, sT))
        a("s_cmp_gt_u32 s%d, 0x40000" % sT)
        a("s_cbranch_scc1 L_pdone_%s" % uid)
        a("buffer_load_dwordx2 v[48:49], v5, s[%d:%d], s%d offen sc1" % (SWS, SWS + 3, sTmp))
        a("s_waitcnt vmcnt(1)")
        a("v_xor_b32 v6, v6, v2")
        a("v_xor_b32 v7, v7, v3")
        a("v_or_b32 v6, v6, v7")
        a("v_cmp_ne_u32 vcc, 0, v6")
        a("s_cbranch_vccz L_pdone_%s" % uid)
        a("buffer_load_dwordx2 v[6:7], v5, s[%d:%d], s%d offen sc1" % (SWS, SWS + 3, sTmp))
        a("s_waitcnt vmcnt(1)")
        a("v_xor_b32 v48, v48, v2")
        a("v_xor_b32 v49, v49, v3")
        a("v_or_b32 v48, v48, v49")
        a("v_cmp_ne_u32 vcc, 0, v48")
        a("s_cbranch_vccnz L_poll_%s" % uid)
        a.lab("L_pdone_%s" % uid)
        a("s_waitcnt vmcnt(0)")
        a.lab("L_skip_%s" % uid)
        a("s_barrier")

    def head(j, nxt_ready):
        mf = []; pre = {}; fill = {}
        for kl in range(4):
            for nt in range(4):
                for qt in range(3):
                    c = "0" if (j == 0 and kl == 0) else vr(ACC(nt, qt))
                    bsrc = vr(Bo(4 * j + kl, qt)) if j < 2 else vr(Bf(kl & 1, qt))
                    asrc = ar(RES[j] + (kl * 4 + nt) * 4) if j in RES else ar(Af(kl & 1, nt))
                    mf.append(lambda kl=kl, nt=nt, qt=qt, c=c, bsrc=bsrc, asrc=asrc: a("v_mfma_f32_16x16x32_bf16 %s, %s, %s, %s" % (vr(ACC(nt, qt)), asrc, bsrc, c)))
            pre[12 * kl] = [lambda kl=kl: a.lwait("a%d_%d" % (j, kl))]
            if kl < 3 and AB_items(j, kl + 1): spread(fill, AB_items(j, kl + 1), 12 * kl + 1, 12 * kl + 10)
        return mf, pre, fill

    a.vwait("U0")
    a("s_barrier")
    for f in AB_items(0, 0): f()
    mf, pre, fill = head(0, True)
    def bar0():
        a.vwait("U1"); a("s_barrier")
    pre[36].append(bar0)
    spread(fill, AB_items(1, 0), 37, 46)
    run_gaps(48, mf, pre, fill)
    mf, pre, fill = head(1, False)
    if SPLIT:
        spread(fill, U_items(3), 1, 14)
        spread(fill, [(lambda s_=s_, qt=qt: o_store(s_, qt, 1)) for qt in range(3) for s_ in range(4)], 15, 47)
    else:
        spread(fill, U_items(3), 1, 34)
    run_gaps(48, mf, pre, fill)
    if SPLIT:
        assert a.vm[-8:] == ["U3"] * 8
        l = a.uid("L_osw")
        a("s_cmp_eq_u32 s%d, 0" % sP)
        a("s_cbranch_scc0 %s" % l)
        a("s_waitcnt vmcnt(8)")
        a.lab(l)
    else:
        a.vwait("OS")
    a.lwait_all()
    a("s_barrier")
    stamp(7)
    def ownA(off=0):
        a("s_lshl_b32 s%d, s%d, 7" % (sTmp, sB))
        a("s_lshl_b32 s3, s%d, 3" % sHP)
        a("s_add_u32 s%d, s%d, s3" % (sTmp, sTmp))
        a("s_add_u32 s%d, s%d, %d" % (sTmp, sTmp, FLAGB + off))
    def pollA(off=0):
        a("s_lshl_b32 s%d, s%d, 7" % (sTmp, sB))
        a("s_and_b32 s3, s%d, 12" % sHP)
        a("s_lshl_b32 s3, s3, 3")
        a("s_add_u32 s%d, s%d, s3" % (sTmp, sTmp))
        a("s_add_u32 s%d, s%d, %d" % (sTmp, sTmp, FLAGB + off))
    if opts.get('tdiag') == 1: stamp(1, True)
    publish(ownA, "A")
    if EP and RES: early_poll(pollA, "A")
    if RES:
        for f in U_items(4): f()
        pull(2)
        a.vwait("U3")
        a.lwait_all()
        a("s_barrier")
        if SPLIT: publish(lambda: ownA(2048), "A1")
        for f in U_items(5): f()
        if not opts.get('pull3late'):
            pull(3)
            a.lwait_all()
            a("s_barrier")
        if not opts.get('u6late', True):
            for f in U_items(6): f()
    def idxA(): a("s_lshl_b32 s3, s%d, 3" % sL)
    wait_flags(pollA, 4, "A", idxA if (EP and RES) else None)
    stamp(8)
    if opts.get('tdiag') == 1: stamp(2, True)
    EARLY = opts.get('oearly', True)
    for f in O_items(2): f()
    if opts.get('pull3late'):
        pull(3)
        a.lwait_all()
    o3 = O_items(3)
    n3 = opts.get('o3_first', 6)
    for f in o3[:n3]: f()
    late_first = o3[n3:] + ([] if RES else U_items(4))
    a.vwait("O2")
    a("s_barrier")
    if opts.get('tdiag') == 1: stamp(3, True)
    for f in AB_items(2, 0): f()
    sA1 = 74
    def early_A1():
        l = a.uid("L_ea")
        a("s_cmp_eq_u32 s%d, 0" % sW)
        a("s_cbranch_scc0 %s" % l)
        pollA(2048)
        a("s_mov_b32 s%d, s%d" % (sA1, sTmp))
        a("v_and_b32 v47, 3, v1")
        a("v_lshlrev_b32 v47, 3, v47")
        a("buffer_load_dwordx2 v[50:51], v47, s[%d:%d], s%d offen sc1" % (SWS, SWS + 3, sA1))
        a.lab(l)
    def check_A1():
        a("s_cmp_eq_u32 s%d, 0" % sW)
        a("s_cbranch_scc0 L_a1ok")
        a("s_mov_b32 s%d, 0" % sT)
        a.lab("L_a1loop")
        a("v_xor_b32 v50, v50, v2")
        a("v_xor_b32 v51, v51, v3")
        a("v_or_b32 v50, v50, v51")
        a("v_cmp_ne_u32 vcc, 0, v50")
        a("s_cbranch_vccz L_a1ok")
        a("s_add_u32 s%d, s%d, 1" % (sT, sT))
        a("s_cmp_gt_u32 s%d, 0x40000" % sT)
        a("s_cbranch_scc1 L_a1ok")
        a("buffer_load_dwordx2 v[50:51], v47, s[%d:%d], s%d offen sc1" % (SWS, SWS + 3, sA1))
        a("s_waitcnt vmcnt(0)")
        a("s_branch L_a1loop")
        a.lab("L_a1ok")
    assert RES or not SPLIT
    for j in range(2, 8):
        mf, pre, fill = head(j, True)
        if SPLIT and j == 2: fill.setdefault(0, []).append(early_A1)
        dma = []; dma_late = []
        if j < 7:
            def nb(j=j):
                a.vwait("O%d" % (j + 1))
                a.vwait("U%d" % (j + 1))
                if SPLIT and j == 3: check_A1()
                a("s_barrier")
            pre[36].append(nb)
            spread(fill, AB_items(j + 1, 0), 37, 47)
        if j == 2: dma += late_first
        if EARLY and j + 2 <= 7: dma_late += O_items(j + 2)
        if j >= 3:
            if not EARLY and j + 1 <= 7: dma += O_items(j + 1)
            if RES:
                if j == 5: dma += U_items(7)
            elif j + 2 <= 7: dma += U_items(j + 2)
        if RES and j == 2 and opts.get('u6late', True): dma += U_items(6)
        if dma: spread(fill, dma, 0, 24)
        if dma_late: spread(fill, dma_late, 37, 48)
        run_gaps(48, mf, pre, fill)
        if opts.get('tdiag') == 1: stamp(2 + j, True)
    stamp(9)
    if opts.get('tdiag') == 2: stamp(1, True)
    a("s_lshl_b32 s%d, s%d, 2" % (sPart, sB))
    a("s_add_u32 s%d, s%d, s%d" % (sPart, sPart, sL))
    a("s_lshl_b32 s%d, s%d, 2" % (sPart, sPart))
    a("s_lshr_b32 s3, s%d, 2" % sHP)
    a("s_add_u32 s%d, s%d, s3" % (sPart, sPart))
    a("s_mul_i32 s%d, s%d, 24" % (sPart, sPart))
    a("s_mul_i32 s3, s%d, 12" % sP)
    a("s_add_u32 s%d, s%d, s3" % (sPart, sPart))
    a("s_mul_i32 s3, s%d, 3" % sQH)
    a("s_add_u32 s%d, s%d, s3" % (sPart, sPart))
    a("s_lshl_b32 s%d, s%d, 10" % (sPart, sPart))
    a("s_add_u32 s%d, s%d, %d" % (sPart, sPart, P2BASE))
    k = 0
    for i in range(2):
        for qt in range(3):
            d = (52 if SPLIT else 100) + 4 * k
            for ab in range(2):
                o = ACC(2 * i + ab, qt)
                a("v_cvt_pk_bf16_f32 v%d, v%d, v%d" % (d + 2 * ab, o, o + 1))
                a("v_cvt_pk_bf16_f32 v%d, v%d, v%d" % (d + 2 * ab + 1, o + 2, o + 3))
            a("s_add_u32 s%d, s%d, %d" % (sTmp, sPart, (6 * i + qt) * 1024))
            a.vmem("buffer_store_dwordx4 %s, v%d, s[%d:%d], s%d offen%s" % (vr(d), vL16, SWS, SWS + 3, sTmp, PST), "P")
            k += 1
    if opts.get('tdiag') == 2: stamp(2, True)
    def pollB0():
        a("s_lshl_b32 s%d, s%d, 2" % (sTmp, sB))
        a("s_add_u32 s%d, s%d, s%d" % (sTmp, sTmp, sL))
        a("s_lshl_b32 s%d, s%d, 7" % (sTmp, sTmp))
        a("s_add_u32 s%d, s%d, %d" % (sTmp, sTmp, FLAGB + 4096))
    if EP: early_poll(pollB0, "B")
    a("s_waitcnt vmcnt(0)")
    a.vm = []
    if opts.get('tdiag') == 2: stamp(3, True)
    a("s_barrier")
    if opts.get('tdiag') == 2: stamp(4, True)
    def ownB():
        a("s_lshl_b32 s%d, s%d, 2" % (sTmp, sB))
        a("s_add_u32 s%d, s%d, s%d" % (sTmp, sTmp, sL))
        a("s_lshl_b32 s%d, s%d, 7" % (sTmp, sTmp))
        a("s_lshr_b32 s3, s%d, 2" % sHP)
        a("s_lshl_b32 s3, s3, 3")
        a("s_add_u32 s%d, s%d, s3" % (sTmp, sTmp))
        a("s_add_u32 s%d, s%d, %d" % (sTmp, sTmp, FLAGB + 4096))
    def pollB():
        a("s_lshl_b32 s%d, s%d, 2" % (sTmp, sB))
        a("s_add_u32 s%d, s%d, s%d" % (sTmp, sTmp, sL))
        a("s_lshl_b32 s%d, s%d, 7" % (sTmp, sTmp))
        a("s_add_u32 s%d, s%d, %d" % (sTmp, sTmp, FLAGB + 4096))
    publish(ownB, "B")
    def idxB():
        a("s_lshr_b32 s3, s%d, 2" % sHP)
        a("s_lshl_b32 s3, s3, 3")
    wait_flags(pollB, 4, "B", idxB if EP else None)
    if opts.get('tdiag') == 2: stamp(5, True)
    a("s_lshl_b32 s%d, s%d, 2" % (sPart, sB))
    a("s_add_u32 s%d, s%d, s%d" % (sPart, sPart, sL))
    a("s_mul_i32 s%d, s%d, 96" % (sPart, sPart))
    a("s_lshr_b32 s3, s%d, 2" % sHP)
    a("s_mul_i32 s3, s3, 6")
    a("s_add_u32 s%d, s%d, s3" % (sPart, sPart))
    a("s_add_u32 s%d, s%d, s%d" % (sPart, sPart, sW))
    a("s_lshl_b32 s%d, s%d, 10" % (sPart, sPart))
    a("s_add_u32 s%d, s%d, %d" % (sPart, sPart, P2BASE))
    a("v_and_b32 v5, 15, v1")
    a("v_lshrrev_b32 v6, 4, v1")
    a("v_lshlrev_b32 v6, 3, v6")
    a("v_lshl_add_u32 v5, v5, 10, v6")
    a("s_mul_i32 s%d, s%d, %d" % (sOB, sB, 96 * 1024))
    a("s_lshl_b32 s3, s%d, 8" % sL)
    a("s_add_u32 s%d, s%d, s3" % (sOB, sOB))
    a("s_lshr_b32 s3, s%d, 2" % sHP)
    a("s_lshl_b32 s3, s3, 6")
    a("s_add_u32 s%d, s%d, s3" % (sOB, sOB))
    a("s_lshl_b32 s3, s%d, 14" % sW)
    a("s_add_u32 s%d, s%d, s3" % (sOB, sOB))
    R = lambda k, i: 64 + (k * 4 + i) * 4
    def fin_loads(k):
        for i in range(4):
            a("s_add_u32 s%d, s%d, %d" % (sTmp, sPart, (i * 24 + 4 * k) * 1024))
            a.vmem("buffer_load_dwordx4 %s, v%d, s[%d:%d], s%d offen%s" % (vr(R(k, i)), vL16, SWS, SWS + 3, sTmp, PLD), "R%d_%d" % (k, i))
    def fin_sum(k):
        AC = 160 + 8 * k
        for i in range(4):
            a.vwait("R%d_%d" % (k, i))
            for d in range(4):
                x = R(k, i) + d
                if i == 0:
                    a("v_lshlrev_b32 v%d, 16, v%d" % (AC + 2 * d, x))
                    a("v_and_b32 v%d, 0xffff0000, v%d" % (AC + 2 * d + 1, x))
                else:
                    a("v_lshlrev_b32 v%d, 16, v%d" % (vT[0], x))
                    a("v_and_b32 v%d, 0xffff0000, v%d" % (vT[1], x))
                    a("v_add_f32 v%d, v%d, v%d" % (AC + 2 * d, AC + 2 * d, vT[0]))
                    a("v_add_f32 v%d, v%d, v%d" % (AC + 2 * d + 1, AC + 2 * d + 1, vT[1]))
        for ab in range(2):
            a("v_cvt_pk_bf16_f32 v%d, v%d, v%d" % (AC + 4 * ab, AC + 4 * ab, AC + 4 * ab + 1))
            a("v_cvt_pk_bf16_f32 v%d, v%d, v%d" % (AC + 4 * ab + 1, AC + 4 * ab + 2, AC + 4 * ab + 3))
            a("s_add_u32 s%d, s%d, %d" % (sTmp, sOB, k * 4 * 16384 + ab * 32))
            a("buffer_store_dwordx2 %s, v5, s[%d:%d], s%d offen%s" % (vr(AC + 4 * ab, 2), SOUT, SOUT + 3, sTmp, opts.get('out_fl', "")))
    a("s_cmp_lt_u32 s%d, 2" % sW)
    a("s_cbranch_scc1 L_fin2")
    vm_save = list(a.vm)
    fin_loads(0)
    if opts.get('tdiag') == 2: stamp(6, True)
    fin_sum(0)
    a("s_branch L_fin_done")
    a.lab("L_fin2")
    a.vm = list(vm_save)
    fin_loads(0); fin_loads(1)
    if opts.get('tdiag') == 2: stamp(6, True)
    fin_sum(0); fin_sum(1)
    a.lab("L_fin_done")
    a.vm = []
    if opts.get('tdiag') == 2: stamp(7, True)
    if ST:
        a("s_waitcnt vmcnt(0)")
        stamp(10)
        a("s_cmp_eq_u32 s%d, 0" % sW)
        a("s_cbranch_scc0 L_st")
        a("s_mul_i32 s3, s2, %d" % (NSTAMP * 8))
        a("s_add_u32 s3, s3, 0x%x" % STAMPB)
        a("v_mov_b32 v2, 0")
        a("v_cmp_eq_u32 vcc, 0, v1")
        a("s_and_saveexec_b64 s[72:73], vcc")
        for i in range(11):
            a("v_mov_b32 v4, s%d" % (76 + 2 * i))
            a("v_mov_b32 v5, s%d" % (77 + 2 * i))
            a("buffer_store_dwordx2 v[4:5], v2, s[%d:%d], s3 offen offset:%d" % (SWS, SWS + 3, i * 8))
            a("s_waitcnt vmcnt(0)")
        if opts.get('dbgstamps'):
            for k, idx in enumerate(opts['dbgstamps']):
                a("v_mov_b32 v4, s%d" % (76 + 2 * idx))
                a("v_not_b32 v5, v4")
                a("buffer_atomic_umax v4, v2, s[%d:%d], 0 offen offset:%d" % (SDBG, SDBG + 3, 8 + 8 * k))
                a("buffer_atomic_umax v5, v2, s[%d:%d], 0 offen offset:%d" % (SDBG, SDBG + 3, 12 + 8 * k))
                a("s_waitcnt vmcnt(0)")
        a("s_mov_b64 exec, s[72:73]")
        a.lab("L_st")
    a("s_endpgm")
    for uid, buf in rare_blocks:
        rare(uid, buf)
    a.lab("L_end")
    a("s_endpgm")
    return a

def build(opts, verbose=False):
    k = gen(dict(opts))
    txt = header(["grid=(256,1,1) block=(256,1,1) lds=163840"], opts.get('comment', ""))
    lines, n = hazard.fix(k.lines, verbose, "g")
    errs = hazard.check_counters(lines, "g")
    for e in errs[:20]: print("ERR", e)
    if verbose: print("nops inserted:", n, "lines:", len(lines))
    txt += "\n".join(lines) + "\n"
    e = hazard.lint_srd(txt)
    assert not e, e
    txt += descriptor(KNAME, 512, 100, 256)
    return txt

if __name__ == "__main__":
    v = "-v" in sys.argv
    base = dict(touch=False, dspread=(2, 46), throttle=5, tlb=True, rot2=True, qmap2=True, qm2_burst=6)
    base['tail_throttle'] = False
    base.update(v1ahead=True, qm2_burst=6)
    base['throttle'] = 6
    base['tlb'] = False
    base['wsbase'] = 0x1C000000
    base.update(kpre=True, bgap=6, throttle=5)
    base.update(pull3late=True)
    comment = """; Fused multi-head attention block for fixed shapes B=16 Sq=96 D=512 H=32 Sk=1024 Dh=128 (bf16 in / bf16 out).
"""
    open("p1_a.s", "w").write(build(dict(base, comment=comment), v))
    open("p1_old.s", "w").write(build(dict(base, comment=comment, epoll=False)))
    open("p1_a_st.s", "w").write(build(dict(base, stamps=True)))
    open("p1_old_st.s", "w").write(build(dict(base, stamps=True, epoll=False)))
```
